```python
import torch

def _softmax(x, axis=-1):
    return torch.softmax(x, dim=axis)
def _gelu(x):
    return torch.nn.functional.gelu(x, approximate="tanh")
def _silu(x):
    return torch.nn.functional.silu(x)
def _sigmoid(x):
    return torch.sigmoid(x)
def _layernorm(x, axis=-1, eps=1e-5):
    m = x.mean(dim=axis, keepdim=True)
    v = x.var(dim=axis, keepdim=True, unbiased=False)
    return (x - m) / torch.sqrt(v + eps)
def _scatter_add(tgt, idx, src, axis=0):
    return tgt.clone().index_add_(axis, idx, src)
def _segment_sum(src, seg, n):
    out = torch.zeros((n,) + src.shape[1:], dtype=src.dtype)
    return out.index_add_(0, seg, src)
def _pad(x, pw):
    flat = tuple(v for pair in reversed(pw) for v in pair)
    return torch.nn.functional.pad(x, flat)

kernel_name = 'parallel_sum__sliding_block_cached__glu_gated_reglu__decode'

def setup_inputs():

    _w = (lambda a: (lambda t: t.to(torch.bfloat16) if t.is_floating_point() else t)(torch.as_tensor(a)))
    def _A_setup():
        B, Sq, D = 1, 1, 576
        Hq, Hkv, Sk, Dh = 32, 16, 32768, 128
        assert Hq % Hkv == 0, (Hq, Hkv)
        return {
            "x": _w((lambda *s: torch.randn(*s, dtype=torch.bfloat16) * 0.05)(B, Sq, D)),
            "k_cache": _w((lambda *s: torch.randn(*s, dtype=torch.bfloat16) * 1.6)(B, Hkv, Sk, Dh)),
            "v_cache": _w((lambda *s: torch.randn(*s, dtype=torch.bfloat16) * 0.8)(B, Hkv, Sk, Dh)),
            "wq": _w((lambda *s: torch.randn(*s, dtype=torch.bfloat16) * 1.6)(D, Hq * Dh) * (D ** -0.5)),
            "wo": _w((lambda *s: torch.randn(*s, dtype=torch.bfloat16) * 0.8)(Hq * Dh, D) * ((Hq * Dh) ** -0.5)),
        }
    _A_in = _A_setup()

    def _B_setup():
        B, S, D, F = 1, 1, 576, 4608
        return {
            "x": _w((lambda *s: torch.randn(*s, dtype=torch.bfloat16) * 0.05)(B, S, D)),
            "W_gate": _w((lambda *s: torch.randn(*s, dtype=torch.bfloat16) * 0.4)(D, F) * (2.0 / D) ** 0.5),
            "W_up": _w((lambda *s: torch.randn(*s, dtype=torch.bfloat16) * 0.4)(D, F) * (2.0 / D) ** 0.5),
            "W_down": _w((lambda *s: torch.randn(*s, dtype=torch.bfloat16) * 0.4)(F, D) * (1.0 / F) ** 0.5),
        }
    _B_in = _B_setup()

    return {
        "A_x": _A_in["x"],
        "A_k_cache": _A_in["k_cache"],
        "A_v_cache": _A_in["v_cache"],
        "A_wq": _A_in["wq"],
        "A_wo": _A_in["wo"],
        "B_x": _B_in["x"],
        "B_W_gate": _B_in["W_gate"],
        "B_W_up": _B_in["W_up"],
        "B_W_down": _B_in["W_down"],
    }

def reference(A_x, A_k_cache, A_v_cache, A_wq, A_wo, B_x, B_W_gate, B_W_up, B_W_down):
    def _A_ref(x, k_cache, v_cache, wq, wo):
        B, Sq, D = x.shape
        Hq, Dh = 32, 128
        Hkv, Sk = k_cache.shape[1], k_cache.shape[2]
        W = min(4096, max(256, Sk // 4))
        rep = Hq // Hkv
        q = (lambda x, *d: x.permute(*d))((x @ wq).reshape(B, Sq, Hq, Dh), 0, 2, 1, 3)
        k = (lambda x, n, axis: torch.repeat_interleave(x, n, dim=axis))(k_cache[:, :, Sk - W:, :], rep, axis=1)
        v = (lambda x, n, axis: torch.repeat_interleave(x, n, dim=axis))(v_cache[:, :, Sk - W:, :], rep, axis=1)
        scores = torch.einsum("bhqd,bhkd->bhqk", q, k) * (Dh ** -0.5)
        p = _softmax(scores, axis=-1)
        o = torch.einsum("bhqk,bhkd->bhqd", p, v)
        return (lambda x, *d: x.permute(*d))(o, 0, 2, 1, 3).reshape(B, Sq, Hq * Dh) @ wo

    def _B_ref(x, W_gate, W_up, W_down):
        gate = torch.einsum("bsd,df->bsf", x, W_gate)
        up = torch.einsum("bsd,df->bsf", x, W_up)
        gate = gate * (lambda x, dt: x.to(dt))(gate > 0, gate.dtype)
        h = gate * up
        return torch.einsum("bsf,fd->bsd", h, W_down)

    x = A_x
    xn = _layernorm(x, axis=-1)
    return x + _A_ref(xn, A_k_cache, A_v_cache, A_wq, A_wo) + _B_ref(xn, B_W_gate, B_W_up, B_W_down)
```

```python
import sys, os
STAMPS = int(os.environ.get("STAMPS","0"))
NAME = "parallel_sum__sliding_block_cached__glu_gated_reglu__decode"
L = []
def e(s=""): L.append(s)
def c(s): L.append("    ; " + s)
for t in range(576):
    assert (t*911) >> 16 == t//72
    assert (t*21846) >> 16 == t//3
    assert (t*745) >> 14 == t//22
for cb in range(144): assert (cb*57) >> 9 == cb//9
for t in range(128): assert (t*171) >> 10 == t//6

XN=0; Q=2304; WMAX=2816; WL=2880; MULT=2944
CNT2=3248; CNT=3252; NONCE=3256
SL=3264; T16=4608; RA1=5888; RED=7424
LDS_END=RED+7*2304
PA1=0; PA2=1<<20; PB=2<<20; PC=3<<20
VA=48; VK=84; VV=116; VC=148; S=48; O=28

e(f"; @launch grid=(256,1,1) block=(576,1,1) lds={LDS_END}")
e('.amdgcn_target "amdgcn-amd-amdhsa--gfx950"')
e(".text")
e(f".globl {NAME}_kernel")
e(".p2align 8")
e(f".type {NAME}_kernel,@function")
e(f"{NAME}_kernel:")
e("    s_cmp_ge_u32 s2, 256")
e("    s_cbranch_scc1 L_end")
e("    s_load_dwordx16 s[4:19], s[0:1], 0")
e("    s_load_dwordx8 s[20:27], s[0:1], 64")
e("    v_lshrrev_b32 v1, 6, v0")
e("    v_and_b32 v2, 63, v0")
e("    v_readfirstlane_b32 s28, v1")
e("    s_lshr_b32 s29, s2, 4")
e("    s_and_b32 s30, s2, 15")
e("    s_waitcnt lgkmcnt(0)")
e("    s_mov_b32 s36, s4")
e("    s_and_b32 s37, s5, 0xffff")
e("    s_movk_i32 s38, 1152")
e("    s_mov_b32 s39, 0x20000")
e("    s_cmp_eq_u32 s28, 8")
e("    s_cbranch_scc1 L_comm")

def bf16r(dst, src):
    e(f"    v_cvt_pk_bf16_f32 {dst}, {src}, {src}")
    e(f"    v_lshlrev_b32 {dst}, 16, {dst}")
def rowsum(v, op="add", rots=(8,4,2,1)):
    for rot in rots:
        e("    s_nop 1")
        e(f"    v_{op}_f32_dpp {v}, {v}, {v} row_ror:{rot} row_mask:0xf bank_mask:0xf")
def crossrow(v, op="add"):
    e("    s_nop 1")
    for r in range(4):
        e(f"    v_readlane_b32 s{64+r}, {v}, {16*r}")
    e("    s_nop 1")
    e(f"    v_mov_b32 {v}, s64")
    for r in range(1,4):
        e(f"    v_{op}_f32 {v}, s{64+r}, {v}")
sst=[0]
def sstamp(i):
    if not STAMPS: return
    n=sst[0]; sst[0]+=1
    e("    s_cmp_lg_u32 s28, 0")
    e(f"    s_cbranch_scc1 L_ss{n}")
    e("    s_memrealtime s[84:85]")
    e("    s_waitcnt lgkmcnt(0)")
    e("    s_lshl_b32 s86, s2, 7")
    e(f"    s_add_u32 s86, s86, {(8<<20)+8*i}")
    e("    v_mov_b32 v37, s86")
    e("    v_mov_b32 v38, s84")
    e("    v_mov_b32 v39, s85")
    e("    s_mov_b64 s[88:89], exec")
    e("    s_mov_b64 exec, 1")
    e("    global_store_dwordx2 v37, v[38:39], s[26:27]")
    e("    s_mov_b64 exec, s[88:89]")
    e(f"L_ss{n}:")
def unpack(r):
    e(f"    v_lshlrev_b32 v44, 16, v{r}")
    e(f"    v_and_b32 v45, 0xffff0000, v{r}")

e("    v_lshlrev_b32 v40, 4, v2")
e("    v_add_u32 v41, 4096, v40")
e("    buffer_load_dwordx4 v[8:11], v40, s[36:39], 0 offen")
e("    buffer_load_dwordx4 v[12:15], v40, s[36:39], 0 offen offset:1024")
c("A1: wq  cb = w>>2, rows 144*(w&3) + (t>>3) + 48j")
e("    s_lshr_b32 s40, s2, 2")
e("    s_and_b32 s41, s2, 3")
e("    s_mul_i32 s42, s41, 144*8192")
e("    s_lshl_b32 s43, s40, 7")
e("    s_add_u32 s42, s42, s43")
e("    s_add_u32 s54, s10, s42")
e("    s_addc_u32 s55, s11, 0")
e("    v_lshrrev_b32 v3, 3, v0")
e("    v_and_b32 v4, 7, v0")
e("    v_lshlrev_b32 v5, 13, v3")
e("    v_lshl_add_u32 v5, v4, 4, v5")
e("    s_mul_i32 s41, s41, 144")
e("    v_add_u32 v42, s41, v3")
e("    v_lshlrev_b32 v42, 2, v42")
e("    s_cmp_ge_u32 s28, 6")
e("    s_cbranch_scc1 L_skipA1")
for j in range(3):
    e(f"    global_load_dwordx4 v[{VA+4*j}:{VA+4*j+3}], v5, s[54:55] nt")
    if j < 2: e("    v_add_u32 v5, 393216, v5")
e("L_skipA1:")
c("A2: [Wg|Wu] col-blocks 9g..9g+8, rows 36p + t/72 + 6j")
e("    v_mul_u32_u24 v3, 911, v0")
e("    v_lshrrev_b32 v3, 16, v3")
e("    v_mul_u32_u24 v4, 72, v3")
e("    v_sub_u32 v4, v0, v4")
e("    v_lshrrev_b32 v6, 3, v4")
e("    v_and_b32 v7, 7, v4")
e("    s_mul_i32 s40, s29, 9")
e("    v_add_u32 v6, s40, v6")
e("    v_cmp_gt_u32 vcc, 72, v6")
e("    v_subrev_u32 v16, 72, v6")
e("    v_mov_b32 v17, s18")
e("    v_mov_b32 v18, s16")
e("    v_cndmask_b32 v6, v16, v6, vcc")
e("    v_cndmask_b32 v17, v17, v18, vcc")
e("    v_mov_b32 v19, s19")
e("    v_mov_b32 v20, s17")
e("    v_cndmask_b32 v19, v19, v20, vcc")
e("    s_mul_i32 s44, s30, 36")
e("    v_add_u32 v22, s44, v3")
e("    v_mul_u32_u24 v23, 9216, v22")
e("    v_lshl_add_u32 v23, v6, 7, v23")
e("    v_lshl_add_u32 v23, v7, 4, v23")
e("    v_add_co_u32 v16, vcc, v17, v23")
e("    v_addc_co_u32 v17, vcc, 0, v19, vcc")
e("    v_lshlrev_b32 v46, 2, v22")
e("    v_mul_u32_u24 v47, 2304, v3")
e("    v_lshl_add_u32 v47, v4, 5, v47")
e("    v_lshlrev_b32 v1, 2, v3")
e("    s_mov_b32 s48, 55296")
e("    s_cmp_eq_u32 s28, 7")
e("    s_cbranch_scc1 L_skipA")
e("    s_movk_i32 s49, 432")
e("    v_cmp_gt_u32 vcc, s49, v0")
e("    s_and_saveexec_b64 s[46:47], vcc")
for j in range(6):
    e(f"    global_load_dwordx4 v[{VA+12+4*j}:{VA+12+4*j+3}], v[16:17], off nt")
    if j < 5:
        e("    v_add_co_u32 v16, vcc, s48, v16")
        e("    v_addc_co_u32 v17, vcc, 0, v17, vcc")
e("    s_mov_b64 exec, s[46:47]")
e("L_skipA:")
c("LN (per wave)")
e("    s_cmp_eq_u32 s28, 7")
e("    s_cbranch_scc1 L_w7x")
e("    s_cmp_eq_u32 s28, 6")
e("    s_cbranch_scc1 L_w6x")
e("    s_waitcnt vmcnt(9)")
e("    s_branch L_xok")
e("L_w6x:")
e("    s_waitcnt vmcnt(6)")
e("    s_branch L_xok")
e("L_w7x:")
e("    s_waitcnt vmcnt(0)")
e("L_xok:")
e("    v_cmp_gt_u32 vcc, 8, v2")
e("    s_nop 1")
e("    v_cndmask_b32 v45, 0, 1.0, vcc")
for k in range(8):
    e(f"    v_lshlrev_b32 v{16+2*k}, 16, v{8+k}")
    e(f"    v_and_b32 v{17+2*k}, 0xffff0000, v{8+k}")
e("    v_add_f32 v32, v16, v17")
for k in range(2,16):
    e(f"    v_add_f32 v32, v32, v{16+k}")
rowsum("v32"); crossrow("v32")
e("    v_mul_f32 v32, 0x3ae38e39, v32")
e("    v_sub_f32 v34, v16, v32")
e("    v_mul_f32 v33, v34, v34")
for k in range(1,16):
    e(f"    v_sub_f32 v34, v{16+k}, v32")
    if k >= 8: e(f"    v_mul_f32 v34, v34, v45")
    e(f"    v_fmac_f32 v33, v34, v34")
rowsum("v33"); crossrow("v33")
e("    v_mul_f32 v33, 0x3ae38e39, v33")
bf16r("v32","v32"); bf16r("v33","v33")
e("    v_add_f32 v33, 0x3727c5ac, v33")
bf16r("v33","v33")
e("    v_sqrt_f32 v33, v33")
e("    s_nop 0")
bf16r("v33","v33")
e("    v_rcp_f32 v33, v33")
e("    s_nop 0")
for k in range(16):
    e(f"    v_sub_f32 v{16+k}, v{16+k}, v32")
    bf16r(f"v{16+k}", f"v{16+k}")
    e(f"    v_mul_f32 v{16+k}, v{16+k}, v33")
    bf16r(f"v{16+k}", f"v{16+k}")
e("    v_lshlrev_b32 v4, 5, v2")
e(f"    ds_write_b128 v4, v[16:19] offset:{XN}")
e(f"    ds_write_b128 v4, v[20:23] offset:{XN+16}")
e("    v_cmp_gt_u32 vcc, 8, v2")
e("    s_and_saveexec_b64 s[46:47], vcc")
e(f"    ds_write_b128 v4, v[24:27] offset:{XN+2048}")
e(f"    ds_write_b128 v4, v[28:31] offset:{XN+2064}")
e("    s_mov_b64 exec, s[46:47]")
c("---- A1 compute (waves 0..5)")
e("    s_cmp_ge_u32 s28, 6")
e("    s_cbranch_scc1 L_skipA1c")
e("    s_waitcnt lgkmcnt(0)")
for j in range(3):
    e(f"    ds_read_b32 v{16+j}, v42 offset:{XN+192*j}")
for i in range(8):
    e(f"    v_mov_b32 v{28+i}, 0")
e("    s_waitcnt lgkmcnt(0)")
for j in range(3):
    e(f"    s_waitcnt vmcnt({8-j})")
    for d in range(4):
        unpack(VA+4*j+d)
        e(f"    v_fmac_f32 v{28+2*d}, v44, v{16+j}")
        e(f"    v_fmac_f32 v{29+2*d}, v45, v{16+j}")
e("    s_nop 1")
for i in range(8):
    e(f"    v_add_f32_dpp v{28+i}, v{28+i}, v{28+i} row_ror:8 row_mask:0xf bank_mask:0xf")
e("    s_nop 1")
for i in range(4):
    e(f"    v_permlane32_swap_b32 v{28+i}, v{32+i}")
for i in range(4):
    e(f"    v_add_f32 v{28+i}, v{28+i}, v{32+i}")
e("    s_nop 1")
for i in range(2):
    e(f"    v_permlane16_swap_b32 v{28+i}, v{30+i}")
for i in range(2):
    e(f"    v_add_f32 v{28+i}, v{28+i}, v{30+i}")
e("    v_and_b32 v3, 7, v2")
e("    v_lshlrev_b32 v3, 5, v3")
e("    v_bfe_u32 v4, v2, 4, 1")
e("    v_lshl_add_u32 v3, v4, 3, v3")
e("    v_lshrrev_b32 v4, 5, v2")
e("    v_lshl_add_u32 v3, v4, 4, v3")
e("    s_lshl_b32 s48, s28, 8")
e("    v_add_u32 v3, s48, v3")
e(f"    ds_write_b64 v3, v[28:29] offset:{RA1}")
e("L_skipA1c:")
e("    s_waitcnt lgkmcnt(0)")
e("    s_barrier   ; Ba")
c("publish A1 partial: wave 0, lanes < 22")
e("    s_cmp_lg_u32 s28, 0")
e("    s_cbranch_scc1 L_skipP1")
e("    v_mov_b32 v17, 0")
e(f"    ds_read_b32 v11, v17 offset:{NONCE}")
e("    v_cmp_gt_u32 vcc, 22, v0")
e("    s_and_saveexec_b64 s[46:47], vcc")
e("    v_mul_u32_u24 v6, 12, v0")
for r in range(6):
    for m in range(3):
        e(f"    ds_read_b32 v{16+4*r+m}, v6 offset:{RA1+256*r+4*m}")
e(f"    s_mul_i32 s48, s2, 352")
if PA1: e(f"    s_add_u32 s48, s48, {PA1}")
e(f"    s_add_u32 s50, s26, s48")
e(f"    s_addc_u32 s51, s27, 0")
e("    v_lshlrev_b32 v4, 4, v0")
e("    s_waitcnt lgkmcnt(0)")
for m in range(3):
    e(f"    v_add_f32 v{8+m}, v{16+m}, v{20+m}")
    for r in range(2,6):
        e(f"    v_add_f32 v{8+m}, v{8+m}, v{16+4*r+m}")
e("    global_store_dwordx4 v4, v[8:11], s[50:51] sc0 sc1")
e("    s_mov_b64 exec, s[46:47]")
e("L_skipP1:")
c("K, V")
e("    s_lshl_b32 s45, s29, 23")
e("    s_lshl_b32 s48, s30, 16")
e("    s_add_u32 s45, s45, s48")
e("    s_lshl_b32 s48, s28, 13")
e("    s_add_u32 s45, s45, s48")
e("    s_add_u32 s45, s45, 7340032")
e("    s_add_u32 s32, s6, s45")
e("    s_addc_u32 s33, s7, 0")
e("    s_add_u32 s34, s8, s45")
e("    s_addc_u32 s35, s9, 0")
for j in range(8):
    e(f"    global_load_dwordx4 v[{VK+4*j}:{VK+4*j+3}], v{40 if j<4 else 41}, s[32:33] offset:{(j%4)*1024} nt")
for j in range(8):
    e(f"    global_load_dwordx4 v[{VV+4*j}:{VV+4*j+3}], v{40 if j<4 else 41}, s[34:35] offset:{(j%4)*1024} nt")
c("C weights: rows (t/72)+7j of [wo rows 16w.. | Wd rows 18w..]")
e("    v_mul_u32_u24 v3, 911, v0")
e("    v_lshrrev_b32 v3, 16, v3")
e("    v_mul_u32_u24 v4, 72, v3")
e("    v_sub_u32 v4, v0, v4")
e("    s_mul_i32 s48, s2, 16*1152")
e("    s_add_u32 s50, s12, s48")
e("    s_addc_u32 s51, s13, 0")
e("    s_mul_i32 s48, s2, 18*1152")
e("    s_add_u32 s52, s20, s48")
e("    s_addc_u32 s53, s21, 0")
e("    s_sub_u32 s52, s52, 16*1152")
e("    s_subb_u32 s53, s53, 0")
e("    v_mov_b32 v24, s50")
e("    v_mov_b32 v25, s51")
e("    v_mov_b32 v26, s52")
e("    v_mov_b32 v27, s53")
for j in range(5):
    e(f"    v_add_u32 v5, {7*j}, v3")
    e("    v_min_u32 v5, 33, v5")
    e("    v_cmp_gt_u32 vcc, 16, v5")
    e("    v_mul_u32_u24 v6, 1152, v5")
    e("    v_lshl_add_u32 v6, v4, 4, v6")
    e("    v_cndmask_b32 v28, v26, v24, vcc")
    e("    v_cndmask_b32 v29, v27, v25, vcc")
    e("    v_add_co_u32 v16, vcc, v28, v6")
    e("    v_addc_co_u32 v17, vcc, 0, v29, vcc")
    e(f"    global_load_dwordx4 v[{VC+4*j}:{VC+4*j+3}], v[16:17], off nt")
c("---- A2 compute (waves 0..6)")
e("    s_cmp_eq_u32 s28, 7")
e("    s_cbranch_scc1 L_skipA2")
e("    s_movk_i32 s49, 432")
e("    v_cmp_gt_u32 vcc, s49, v0")
e("    s_and_saveexec_b64 s[46:47], vcc")
for j in range(6):
    e(f"    ds_read_b32 v{16+j}, v46 offset:{XN+24*j}")
for i in range(8):
    e(f"    v_mov_b32 v{28+i}, 0")
e("    s_waitcnt lgkmcnt(0)")
for j in range(6):
    e(f"    s_waitcnt vmcnt({26-j})")
    for d in range(4):
        unpack(VA+12+4*j+d)
        e(f"    v_fmac_f32 v{28+2*d}, v44, v{16+j}")
        e(f"    v_fmac_f32 v{29+2*d}, v45, v{16+j}")
e(f"    ds_write_b128 v47, v[28:31] offset:{RED}")
e(f"    ds_write_b128 v47, v[32:35] offset:{RED+16}")
e("    s_mov_b64 exec, s[46:47]")
e("    s_waitcnt lgkmcnt(0)")
e("    v_mov_b32 v17, 0")
e("    v_mov_b32 v16, 1")
e("    s_mov_b64 exec, 1")
e(f"    ds_add_u32 v17, v16 offset:{CNT}")
e("    s_mov_b64 exec, -1")
e("L_skipA2:")
c("publish A2 partial: threads < 198 (waves 0..3) once all 7 waves have written")
e("    s_cmp_ge_u32 s28, 4")
e("    s_cbranch_scc1 L_skipPA0")
e("    v_mov_b32 v17, 0")
e("L_spin:")
e(f"    ds_read_b32 v16, v17 offset:{CNT}")
e("    s_waitcnt lgkmcnt(0)")
e("    v_readfirstlane_b32 s48, v16")
e("    s_cmp_lt_u32 s48, 7")
e("    s_cbranch_scc1 L_spin")
e(f"    ds_read_b32 v11, v17 offset:{NONCE}")
e("    s_movk_i32 s48, 198")
e("    v_cmp_gt_u32 vcc, s48, v0")
e("    s_and_saveexec_b64 s[46:47], vcc")
e("    v_mul_u32_u24 v5, 745, v0")
e("    v_lshrrev_b32 v5, 14, v5")
e("    v_mul_u32_u24 v6, 22, v5")
e("    v_sub_u32 v6, v0, v6")
e("    v_mul_u32_u24 v6, 12, v6")
e("    v_lshl_add_u32 v6, v5, 8, v6")
for r in range(6):
    for m in range(3):
        e(f"    ds_read_b32 v{16+4*r+m}, v6 offset:{RED+2304*r+4*m}")
e(f"    s_mul_i32 s48, s2, 3168")
e(f"    s_add_u32 s48, s48, {PA2}")
e(f"    s_add_u32 s50, s26, s48")
e(f"    s_addc_u32 s51, s27, 0")
e("    v_lshlrev_b32 v4, 4, v0")
e("    s_waitcnt lgkmcnt(0)")
for m in range(3):
    e(f"    v_add_f32 v{8+m}, v{16+m}, v{20+m}")
    for r in range(2,6):
        e(f"    v_add_f32 v{8+m}, v{8+m}, v{16+4*r+m}")
e("    global_store_dwordx4 v4, v[8:11], s[50:51] sc0 sc1")
e("    s_mov_b64 exec, s[46:47]")
e("L_skipPA0:")
sstamp(3)
e("    s_barrier   ; B3 (q ready)")
sstamp(4)
c("---- scores")
e("    v_and_b32 v3, 15, v2")
e("    v_lshlrev_b32 v3, 4, v3")
e(f"    ds_read_b128 v[8:11], v3 offset:{Q}")
e(f"    ds_read_b128 v[12:15], v3 offset:{Q+256}")
e("    s_waitcnt lgkmcnt(0)")
e("    s_waitcnt vmcnt(13)")
sstamp(6)
for j in range(8):
    for d in range(4):
        for h in range(2):
            q = 8+4*h
            src = "0" if d == 0 else f"v{S+2*j+h}"
            e(f"    v_dot2_f32_bf16 v{S+2*j+h}, v{VK+4*j+d}, v{q+d}, {src}")
for rot in (8,4,2,1):
    for k in range(16):
        e(f"    v_add_f32_dpp v{S+k}, v{S+k}, v{S+k} row_ror:{rot} row_mask:0xf bank_mask:0xf")
c("scale*log2e folded: t = s * (128^-0.5 * log2 e)")
e("    v_mov_b32 v16, 0x3e0293ee")
for k in range(16):
    e(f"    v_mul_f32 v{S+k}, v{S+k}, v16")
for h in range(2):
    e(f"    v_max3_f32 v{64+h}, v{S+h}, v{S+2+h}, v{S+4+h}")
    e(f"    v_max3_f32 v{66+h}, v{S+6+h}, v{S+8+h}, v{S+10+h}")
    e(f"    v_max3_f32 v{64+h}, v{64+h}, v{S+12+h}, v{S+14+h}")
    e(f"    v_max_f32 v{64+h}, v{64+h}, v{66+h}")
c("cross-row max of both heads: swap trick -> lanes<32: head0 over (r, r+2) ...")
e("    s_nop 1")
e("    v_permlane32_swap_b32 v64, v65")
e("    v_max_f32 v64, v64, v65")
e("    v_mov_b32 v65, v64")
e("    s_nop 1")
e("    v_permlane16_swap_b32 v64, v65")
e("    v_max_f32 v64, v64, v65")
e("    s_lshl_b32 s48, s28, 3")
e("    v_lshrrev_b32 v17, 5, v2")
e("    v_lshl_add_u32 v17, v17, 2, s48")
e("    s_mov_b64 s[46:47], exec")
e("    s_mov_b32 exec_lo, 1")
e("    s_mov_b32 exec_hi, 1")
e(f"    ds_write_b32 v17, v64 offset:{WMAX}")
e("    s_waitcnt lgkmcnt(0)")
e("    s_mov_b32 exec_hi, 0")
e("    v_mov_b32 v17, 0")
e("    v_mov_b32 v16, 1")
e(f"    ds_add_u32 v17, v16 offset:{CNT2}")
e("    s_mov_b64 exec, s[46:47]")
e("    v_mov_b32 v17, 0")
e("L_spin2:")
e(f"    ds_read_b32 v16, v17 offset:{CNT2}")
e("    s_waitcnt lgkmcnt(0)")
e("    v_readfirstlane_b32 s48, v16")
e("    s_cmp_lt_u32 s48, 8")
e("    s_cbranch_scc1 L_spin2")
for k in range(4):
    e(f"    ds_read_b128 v[{68+4*k}:{68+4*k+3}], v17 offset:{WMAX+16*k}")
e("    s_waitcnt lgkmcnt(0)")
for h in range(2):
    e(f"    v_max3_f32 v{66+h}, v{68+h}, v{70+h}, v{72+h}")
    e(f"    v_max3_f32 v{64+h}, v{74+h}, v{76+h}, v{78+h}")
    e(f"    v_max3_f32 v{66+h}, v{66+h}, v{80+h}, v{82+h}")
    e(f"    v_max_f32 v{66+h}, v{66+h}, v{64+h}")
for k in range(16):
    e(f"    v_sub_f32 v{S+k}, v{S+k}, v{66+(k%2)}")
for k in range(16):
    e(f"    v_exp_f32 v{S+k}, v{S+k}")
e("    s_nop 0")
for h in range(2):
    e(f"    v_add_f32 v{64+h}, v{S+h}, v{S+2+h}")
    for j in range(2,8):
        e(f"    v_add_f32 v{64+h}, v{64+h}, v{S+2*j+h}")
e("    s_nop 1")
e("    v_permlane32_swap_b32 v64, v65")
e("    v_add_f32 v64, v64, v65")
e("    v_mov_b32 v65, v64")
e("    s_nop 1")
e("    v_permlane16_swap_b32 v64, v65")
e("    v_add_f32 v64, v64, v65")
e("    s_lshl_b32 s48, s28, 3")
e("    v_lshrrev_b32 v17, 5, v2")
e("    v_lshl_add_u32 v17, v17, 2, s48")
e("    s_mov_b64 s[46:47], exec")
e("    s_mov_b32 exec_lo, 1")
e("    s_mov_b32 exec_hi, 1")
e(f"    ds_write_b32 v17, v64 offset:{WL}")
e("    s_mov_b64 exec, s[46:47]")
c("---- PV")
for j in range(8):
    e(f"    s_waitcnt vmcnt({12-j})")
    for d in range(4):
        unpack(VV+4*j+d)
        for h in range(2):
            a = O+8*h+2*d
            sel = "op_sel:[0,0,0] op_sel_hi:[1,0,1]" if h == 0 else "op_sel:[0,1,0] op_sel_hi:[1,1,1]"
            if j == 0:
                e(f"    v_pk_mul_f32 v[{a}:{a+1}], v[44:45], v[{S}:{S+1}] " + ("op_sel:[0,0] op_sel_hi:[1,0]" if h == 0 else "op_sel:[0,1] op_sel_hi:[1,1]"))
            else:
                e(f"    v_pk_fma_f32 v[{a}:{a+1}], v[44:45], v[{S+2*j}:{S+2*j+1}], v[{a}:{a+1}] {sel}")
e("    s_nop 1")
for i in range(8):
    e(f"    v_permlane32_swap_b32 v{O+i}, v{O+8+i}")
for i in range(8):
    e(f"    v_add_f32 v{O+i}, v{O+i}, v{O+8+i}")
e("    s_nop 1")
for i in range(4):
    e(f"    v_permlane16_swap_b32 v{O+i}, v{O+4+i}")
for i in range(4):
    e(f"    v_add_f32 v{O+i}, v{O+i}, v{O+4+i}")
e("    v_and_b32 v3, 15, v2")
e("    v_lshlrev_b32 v3, 5, v3")
e("    v_bfe_u32 v4, v2, 4, 1")
e("    v_lshl_add_u32 v3, v4, 4, v3")
e("    v_lshrrev_b32 v4, 5, v2")
e("    v_lshl_add_u32 v3, v4, 9, v3")
e("    s_lshl_b32 s48, s28, 10")
e("    v_add_u32 v3, s48, v3")
e(f"    ds_write_b128 v3, v[{O}:{O+3}] offset:{RED}")
e("    s_waitcnt lgkmcnt(0)")
sstamp(7)
e("    s_barrier   ; B4")
e("    s_barrier   ; B5 (o/h ready)")
c("---- phase C")
for j in range(5):
    e(f"    ds_read_b32 v{8+j}, v1 offset:{MULT+28*j}")
e("    s_waitcnt lgkmcnt(0)")
for j in range(5):
    e(f"    s_waitcnt vmcnt({4-j})")
    for d in range(4):
        unpack(VC+4*j+d)
        a = O+2*d
        if j == 0:
            e(f"    v_mul_f32 v{a}, v44, v{8+j}")
            e(f"    v_mul_f32 v{a+1}, v45, v{8+j}")
        else:
            e(f"    v_fmac_f32 v{a}, v44, v{8+j}")
            e(f"    v_fmac_f32 v{a+1}, v45, v{8+j}")
e("    s_movk_i32 s49, 504")
e("    v_cmp_gt_u32 vcc, s49, v0")
e("    s_and_saveexec_b64 s[46:47], vcc")
e("    s_cbranch_execz L_skipC")
e(f"    ds_write_b128 v47, v[{O}:{O+3}] offset:{RED}")
e(f"    ds_write_b128 v47, v[{O+4}:{O+7}] offset:{RED+16}")
e("L_skipC:")
e("    s_mov_b64 exec, s[46:47]")
e("    s_waitcnt lgkmcnt(0)")
e("    s_barrier   ; B6a")
c("second-level reduce + tagged publish by threads < 192 (waves 0..2)")
e("    s_cmp_ge_u32 s28, 3")
e("    s_cbranch_scc1 L_skipC2")
e("    v_mov_b32 v17, 0")
e(f"    ds_read_b32 v67, v17 offset:{NONCE}")
e("    v_mul_u32_u24 v8, 12, v0")
for r in range(7):
    for m in range(3):
        e(f"    ds_read_b32 v{72+4*r+m}, v8 offset:{RED+2304*r+4*m}")
e(f"    s_mul_i32 s48, s2, 3072")
e(f"    s_add_u32 s48, s48, {PC}")
e(f"    s_add_u32 s50, s26, s48")
e(f"    s_addc_u32 s51, s27, 0")
e("    v_lshlrev_b32 v4, 4, v0")
e("    s_waitcnt lgkmcnt(0)")
for m in range(3):
    e(f"    v_add_f32 v{64+m}, v{72+m}, v{76+m}")
    for r in range(2,7):
        e(f"    v_add_f32 v{64+m}, v{64+m}, v{72+4*r+m}")
e("    global_store_dwordx4 v4, v[64:67], s[50:51] sc0 sc1")
e("L_skipC2:")
sstamp(12)
e("    s_endpgm")

def stamp(i):
    if not STAMPS: return
    e("    s_memrealtime s[76:77]")
    e("    s_waitcnt lgkmcnt(0)")
    e("    v_mov_b32 v52, s76")
    e("    v_mov_b32 v53, s77")
    e("    s_lshl_b32 s78, s2, 7")
    e(f"    s_add_u32 s78, s78, {(8<<20)+8*i}")
    e("    v_mov_b32 v54, s78")
    e("    s_mov_b64 s[80:81], exec")
    e("    s_mov_b64 exec, 1")
    e("    global_store_dwordx2 v54, v[52:53], s[26:27]")
    e("    s_mov_b64 exec, s[80:81]")
pc=[0]
def gather(addrs, regs, base):
    n = pc[0]; pc[0]+=1
    e("    s_mov_b32 s70, 0")
    e(f"L_g{n}:")
    for a,r in zip(addrs,regs):
        e(f"    global_load_dwordx4 v[{r}:{r+3}], v{a}, {base} sc0 sc1")
    e("    s_waitcnt vmcnt(0)")
    e(f"    v_xor_b32 v62, v63, v{regs[0]+3}")
    for r in regs[1:]:
        e(f"    v_xor_b32 v61, v63, v{r+3}")
        e("    v_or_b32 v62, v62, v61")
    e("    v_cmp_ne_u32 vcc, 0, v62")
    e(f"    s_cbranch_vccz L_gd{n}")
    e("    s_sleep 1")
    e("    s_add_u32 s70, s70, 1")
    e("    s_cmp_lt_u32 s70, 0x100000")
    e(f"    s_cbranch_scc1 L_g{n}")
    e(f"L_gd{n}:")

e("L_comm:")
stamp(0)
c("nonce: WG 0 installs its clock value in d_debug[0]; the others poll it")
e("    s_memrealtime s[74:75]")
e("    v_mov_b32 v4, 0")
e("    v_mov_b32 v5, 0")
e("    v_mov_b32 v6, 0")
e("    v_mov_b32 v7, 0")
e("    v_lshlrev_b32 v3, 4, v2")
e("    v_cmp_gt_u32 vcc, 20, v2")
e("    s_and_saveexec_b64 s[46:47], vcc")
e(f"    ds_write_b128 v3, v[4:7] offset:{MULT}")
e("    s_mov_b64 exec, s[46:47]")
e("    s_waitcnt lgkmcnt(0)")
e("    s_or_b32 s74, s74, 1")
e("    v_mov_b32 v8, s74")
e("    s_mov_b64 s[46:47], exec")
e("    s_mov_b64 exec, 1")
e("    s_cmp_lg_u32 s2, 0")
e("    s_cbranch_scc1 L_npoll")
e("    global_store_dword v4, v8, s[24:25] sc0 sc1")
e("    v_mov_b32 v10, v8")
e("    s_branch L_ndone")
e("L_npoll:")
e("    s_mov_b32 s70, 0")
e("L_np:")
e("    global_load_dword v10, v4, s[24:25] sc0 sc1")
e("    s_waitcnt vmcnt(0)")
e("    v_readfirstlane_b32 s71, v10")
e("    s_cmp_lg_u32 s71, 0")
e("    s_cbranch_scc1 L_ndone")
e("    s_add_u32 s70, s70, 1")
e("    s_cmp_lt_u32 s70, 0x100000")
e("    s_cbranch_scc1 L_np")
e("L_ndone:")
e("    s_nop 0")
e("    v_readfirstlane_b32 s74, v10")
e("    s_mov_b64 exec, s[46:47]")
e("    v_mov_b32 v63, s74")
e("    v_mov_b32 v5, 0")
e(f"    ds_write_b32 v5, v63 offset:{NONCE}")
e("    s_waitcnt lgkmcnt(0)")
stamp(1)
c("q gather addresses: 4 col-blocks x 22 granules x 4 partials")
for k in range(2):
    e(f"    v_add_u32 v4, {64*k}, v2")
    e("    v_min_u32 v4, 87, v4")
    e("    v_mul_u32_u24 v5, 745, v4")
    e("    v_lshrrev_b32 v5, 14, v5")
    e("    v_mul_u32_u24 v6, 22, v5")
    e("    v_sub_u32 v6, v4, v6")
    e("    s_lshl_b32 s48, s29, 2")
    e("    v_add_u32 v7, s48, v5")
    e("    v_mul_u32_u24 v10, 1408, v7")
    e("    v_lshl_add_u32 v10, v6, 4, v10")
    e(f"    v_mov_b32 v{28+2*k}, v5")
    e(f"    v_mov_b32 v{29+2*k}, v6")
    for pp in range(4):
        e(f"    v_add_u32 v{20+4*k+pp}, {PA1+352*pp}, v10")
e("    s_barrier   ; Ba")
stamp(2)
gather([20+i for i in range(8)], [64+4*i for i in range(8)], "s[26:27]")
for k in range(2):
    for pp in range(1,4):
        for m in range(3):
            e(f"    v_add_f32 v{64+16*k+m}, v{64+16*k+m}, v{64+16*k+4*pp+m}")
    e(f"    v_cvt_pk_bf16_f32 v64, v{64+16*k}, v{64+16*k}")
    e(f"    v_cvt_pk_bf16_f32 v65, v{65+16*k}, v{65+16*k}")
    e(f"    v_cvt_pk_bf16_f32 v66, v{66+16*k}, v{66+16*k}")
    e(f"    v_mul_u32_u24 v6, 3, v{29+2*k}")
    e(f"    v_lshl_add_u32 v7, v{28+2*k}, 6, v6")
    e("    v_lshlrev_b32 v7, 1, v7")
    e(f"    ds_write_b16 v7, v64 offset:{Q}")
    e("    v_cmp_gt_u32 vcc, 63, v6")
    e("    s_and_saveexec_b64 s[46:47], vcc")
    e(f"    ds_write_b16 v7, v65 offset:{Q+2}")
    e(f"    ds_write_b16 v7, v66 offset:{Q+4}")
    e("    s_mov_b64 exec, s[46:47]")
e("    s_waitcnt lgkmcnt(0)")
stamp(5)
e("    s_barrier   ; B3")
c("addresses for the o gather (v20,v21 ; LDS v22,v23) and the h gather (v24..39, slot v44)")
e("    s_lshr_b32 s48, s2, 3")
e("    s_and_b32 s48, s48, 1")
e("    s_mul_i32 s48, s48, 768")
e("    s_and_b32 s49, s2, 7")
e("    s_mul_i32 s49, s49, 96")
e("    s_add_u32 s48, s48, s49")
e("    s_mul_i32 s49, s29, 16*1536")
e("    s_add_u32 s48, s48, s49")
e(f"    s_add_u32 s48, s48, {PB}")
for k in range(2):
    e(f"    v_add_u32 v4, {64*k}, v2")
    e("    v_min_u32 v4, 95, v4")
    e("    v_mul_u32_u24 v5, 171, v4")
    e("    v_lshrrev_b32 v5, 10, v5")
    e("    v_mul_u32_u24 v6, 6, v5")
    e("    v_sub_u32 v6, v4, v6")
    e(f"    v_mul_u32_u24 v{20+k}, 1536, v5")
    e(f"    v_lshl_add_u32 v{20+k}, v6, 4, v{20+k}")
    e(f"    v_add_u32 v{20+k}, s48, v{20+k}")
    e("    v_mul_u32_u24 v6, 12, v6")
    e("    v_mul_u32_u24 v7, 80, v5")
    e(f"    v_add_u32 v{22+k}, v6, v7")
e("    s_mul_i32 s48, s2, 18")
e("    v_and_b32 v4, 31, v2")
e("    v_min_u32 v4, 17, v4")
e("    v_add_u32 v4, s48, v4")
e("    v_lshrrev_b32 v5, 6, v4")
e("    v_and_b32 v6, 63, v4")
e("    v_lshrrev_b32 v7, 5, v2")
e("    v_mul_u32_u24 v7, 72, v7")
e("    v_add_u32 v7, v7, v5")
e("    v_mul_u32_u24 v8, 57, v7")
e("    v_lshrrev_b32 v8, 9, v8")
e("    v_mul_u32_u24 v9, 9, v8")
e("    v_sub_u32 v9, v7, v9")
e("    v_mul_u32_u24 v10, 50688, v8")
e("    v_mul_u32_u24 v9, 352, v9")
e("    v_add_u32 v10, v10, v9")
e("    v_mul_u32_u24 v11, 21846, v6")
e("    v_lshrrev_b32 v11, 16, v11")
e("    v_lshl_add_u32 v10, v11, 4, v10")
e("    v_mul_u32_u24 v11, 3, v11")
e("    v_sub_u32 v44, v6, v11")
for pp in range(16):
    e(f"    v_add_u32 v{24+pp}, {PA2+3168*pp}, v10")
c("h gather (off the critical path while the streamers do attention)")
gather([24+pp for pp in range(16)],[80+4*pp for pp in range(16)],"s[26:27]")
for pp in range(1,16):
    for m in range(3):
        e(f"    v_add_f32 v{80+m}, v{80+m}, v{80+4*pp+m}")
e("    v_cmp_eq_u32 vcc, 1, v44")
e("    s_nop 1")
e("    v_cndmask_b32 v80, v80, v81, vcc")
e("    v_cmp_eq_u32 vcc, 2, v44")
e("    s_nop 1")
e("    v_cndmask_b32 v80, v80, v82, vcc")
bf16r("v80","v80")
e("    s_nop 1")
e("    v_permlane32_swap_b32 v80, v81")
e("    v_max_f32 v80, 0, v80")
e("    v_mul_f32 v80, v80, v81")
bf16r("v80","v80")
e("    v_lshlrev_b32 v4, 2, v2")
e("    v_cmp_gt_u32 vcc, 18, v2")
e("    s_and_saveexec_b64 s[46:47], vcc")
e(f"    ds_write_b32 v4, v80 offset:{MULT+64}")
e("    s_mov_b64 exec, s[46:47]")
stamp(9)
e("    s_barrier   ; B4")
stamp(8)
c("reduce 8 wave partials -> SL[hh][s][20] -> tagged publish B (96 granules)")
e("    v_lshlrev_b32 v4, 4, v2")
for k in range(8):
    e(f"    ds_read_b128 v[{64+4*k}:{64+4*k+3}], v4 offset:{RED+1024*k}")
e("    v_mov_b32 v5, 0")
for k in range(4):
    e(f"    ds_read_b128 v[{96+4*k}:{96+4*k+3}], v5 offset:{WMAX+16*k}")
    e(f"    ds_read_b128 v[{112+4*k}:{112+4*k+3}], v5 offset:{WL+16*k}")
e("    s_waitcnt lgkmcnt(0)")
for k in range(1,8):
    for m in range(4):
        e(f"    v_add_f32 v{64+m}, v{64+m}, v{64+4*k+m}")
for h in range(2):
    e(f"    v_max_f32 v{16+2*h}, v{96+h}, v{98+h}")
    e(f"    v_add_f32 v{17+2*h}, v{112+h}, v{114+h}")
    for k in range(2,8):
        e(f"    v_max_f32 v{16+2*h}, v{16+2*h}, v{96+2*k+h}")
        e(f"    v_add_f32 v{17+2*h}, v{17+2*h}, v{112+2*k+h}")
e("    v_cmp_le_u32 vcc, 32, v2")
e("    s_nop 1")
e("    v_cndmask_b32 v16, v16, v18, vcc")
e("    v_cndmask_b32 v17, v17, v19, vcc")
e("    v_lshrrev_b32 v6, 5, v2")
e("    v_mul_u32_u24 v6, 640, v6")
e("    v_bfe_u32 v7, v2, 2, 3")
e("    v_mul_u32_u24 v7, 80, v7")
e("    v_add_u32 v6, v6, v7")
e("    v_and_b32 v7, 3, v2")
e("    v_lshl_add_u32 v8, v7, 4, v6")
e(f"    ds_write_b128 v8, v[64:67] offset:{SL}")
e(f"    ds_write_b64 v6, v[16:17] offset:{SL+64}")
e("    s_waitcnt lgkmcnt(0)")
e(f"    s_mul_i32 s48, s2, 1536")
e(f"    s_add_u32 s48, s48, {PB}")
e(f"    s_add_u32 s50, s26, s48")
e(f"    s_addc_u32 s51, s27, 0")
for k in range(2):
    e(f"    v_add_u32 v4, {64*k}, v2")
    e("    v_min_u32 v4, 95, v4")
    e("    v_mul_u32_u24 v5, 171, v4")
    e("    v_lshrrev_b32 v5, 10, v5")
    e("    v_mul_u32_u24 v6, 6, v5")
    e("    v_sub_u32 v6, v4, v6")
    e("    v_mul_u32_u24 v6, 12, v6")
    e("    v_mul_u32_u24 v7, 80, v5")
    e("    v_add_u32 v6, v6, v7")
    for m in range(3):
        e(f"    ds_read_b32 v{8+4*k+m}, v6 offset:{SL+4*m}")
    e(f"    v_mov_b32 v{11+4*k}, v63")
    e(f"    v_lshlrev_b32 v{16+k}, 4, v4")
e("    s_waitcnt lgkmcnt(0)")
for k in range(2):
    e(f"    global_store_dwordx4 v{16+k}, v[{8+4*k}:{11+4*k}], s[50:51] sc0 sc1")
gather([20,21],[64,68],"s[26:27]")
stamp(10)
for k in range(2):
    for m in range(3):
        e(f"    ds_write_b32 v{22+k}, v{64+4*k+m} offset:{T16+4*m}")
e("    s_waitcnt lgkmcnt(0)")
e("    v_lshrrev_b32 v4, 2, v2")
e("    v_mul_u32_u24 v4, 80, v4")
e(f"    ds_read_b64 v[12:13], v4 offset:{T16+64}")
e("    v_and_b32 v5, 3, v2")
e("    v_lshl_add_u32 v4, v5, 4, v4")
e(f"    ds_read_b128 v[8:11], v4 offset:{T16}")
e("    s_waitcnt lgkmcnt(0)")
e("    v_mov_b32 v14, v12")
rowsum("v14","max",(8,4))
crossrow("v14","max")
e("    v_sub_f32 v14, v12, v14")
e("    v_exp_f32 v14, v14")
e("    s_nop 0")
e("    v_mul_f32 v15, v14, v13")
rowsum("v15","add",(8,4))
crossrow("v15","add")
for m in range(4):
    e(f"    v_mul_f32 v{8+m}, v{8+m}, v14")
for m in range(4):
    rowsum(f"v{8+m}","add",(8,4))
e("    v_lshrrev_b32 v6, 4, v2")
e("    v_lshlrev_b32 v6, 6, v6")
e("    v_lshl_add_u32 v6, v5, 4, v6")
e("    v_and_b32 v7, 12, v2")
e("    v_cmp_eq_u32 vcc, 0, v7")
e("    s_and_saveexec_b64 s[46:47], vcc")
e(f"    ds_write_b128 v6, v[8:11] offset:{SL}")
e("    s_mov_b64 exec, s[46:47]")
e("    s_waitcnt lgkmcnt(0)")
e("    v_lshlrev_b32 v5, 4, v5")
for r in range(4):
    e(f"    ds_read_b128 v[{64+4*r}:{64+4*r+3}], v5 offset:{SL+64*r}")
e("    v_rcp_f32 v15, v15")
e("    s_waitcnt lgkmcnt(0)")
for m in range(4):
    e(f"    v_add_f32 v{64+m}, v{64+m}, v{68+m}")
    e(f"    v_add_f32 v{72+m}, v{72+m}, v{76+m}")
    e(f"    v_add_f32 v{64+m}, v{64+m}, v{72+m}")
    e(f"    v_mul_f32 v{64+m}, v{64+m}, v15")
    bf16r(f"v{64+m}", f"v{64+m}")
e("    v_cmp_gt_u32 vcc, 4, v2")
e("    s_and_saveexec_b64 s[46:47], vcc")
e(f"    ds_write_b128 v5, v[64:67] offset:{MULT}")
e("    s_mov_b64 exec, s[46:47]")
e("    s_waitcnt lgkmcnt(0)")
e("    s_barrier   ; B5")
stamp(11)
c("final reduce: WG r < 192 owns columns 3r..3r+2")
e("    s_cmp_ge_u32 s2, 192")
e("    s_cbranch_scc1 L_fin0")
e("    s_lshl_b32 s48, s2, 4")
e(f"    s_add_u32 s48, s48, {PC}")
e("    v_mul_u32_u24 v4, 3072, v2")
for j in range(4):
    e(f"    v_add_u32 v{20+j}, s48, v4")
    if j < 3: e("    v_add_u32 v4, 196608, v4")
e("    s_mul_i32 s48, s2, 6")
e("    v_min_u32 v7, 2, v2")
e("    v_lshlrev_b32 v7, 1, v7")
e("    v_add_u32 v7, s48, v7")
e("    buffer_load_ushort v12, v7, s[36:39], 0 offen")
e("L_fin0:")
e("    s_barrier   ; B6a")
e("    s_cmp_ge_u32 s2, 192")
e("    s_cbranch_scc1 L_end2")
gather([20+j for j in range(4)], [64+4*j for j in range(4)], "s[26:27]")
stamp(13)
for j in range(1,4):
    for m in range(3):
        e(f"    v_add_f32 v{64+m}, v{64+m}, v{64+4*j+m}")
for rot in (8,4,2,1):
    e("    s_nop 1")
    for m in range(3):
        e(f"    v_add_f32_dpp v{64+m}, v{64+m}, v{64+m} row_ror:{rot} row_mask:0xf bank_mask:0xf")
for m in range(3):
    crossrow(f"v{64+m}")
e("    v_cmp_eq_u32 vcc, 1, v2")
e("    s_nop 1")
e("    v_cndmask_b32 v64, v64, v65, vcc")
e("    v_cmp_eq_u32 vcc, 2, v2")
e("    s_nop 1")
e("    v_cndmask_b32 v64, v64, v66, vcc")
e("    v_lshlrev_b32 v12, 16, v12")
e("    v_add_f32 v64, v64, v12")
e("    v_cvt_pk_bf16_f32 v65, v64, v64")
e("    s_mov_b32 s56, s22")
e("    s_and_b32 s57, s23, 0xffff")
e("    s_movk_i32 s58, 1152")
e("    s_mov_b32 s59, 0x20000")
e("    v_cmp_gt_u32 vcc, 3, v2")
e("    s_and_saveexec_b64 s[46:47], vcc")
e("    buffer_store_short v65, v7, s[56:59], 0 offen")
e("    s_mov_b64 exec, s[46:47]")
e("L_end2:")
stamp(14)
e("L_end:")
e("    s_endpgm")
e('.section .rodata,"a"')
e(".p2align 6")
e(f".amdhsa_kernel {NAME}_kernel")
e("  .amdhsa_next_free_vgpr 168")
e("  .amdhsa_next_free_sgpr 96")
e("  .amdhsa_accum_offset 168")
e("  .amdhsa_group_segment_fixed_size 0")
e("  .amdhsa_kernarg_size 96")
e("  .amdhsa_user_sgpr_count 2")
e("  .amdhsa_user_sgpr_kernarg_segment_ptr 1")
e("  .amdhsa_system_sgpr_workgroup_id_x 1")
e(".end_amdhsa_kernel")
open("diag.s" if STAMPS else f"cdna_kernels/{NAME}.s","w").write("\n".join(L)+"\n")
print("lines", len(L))
```

```python
import sys, os
STAMPS = int(os.environ.get("STAMPS","0"))
NAME = "parallel_sum__sliding_block_cached__glu_gated_reglu__decode"
L = []
def e(s=""): L.append(s)
def c(s): L.append("    ; " + s)
for t in range(576):
    assert (t*911) >> 16 == t//72
    assert (t*21846) >> 16 == t//3
    assert (t*745) >> 14 == t//22
for cb in range(144): assert (cb*57) >> 9 == cb//9
for t in range(128): assert (t*171) >> 10 == t//6

XN=0; Q=2304; WMAX=2816; WL=2880; MULT=2944
CNT2=3248; CNT=3252; NONCE=3256
SL=3264; T16=4608; RA1=5888; RED=7424
LDS_END=RED+7*2304
PA1=0; PA2=1<<20; PB=2<<20; PC=3<<20
VA=48; VK=84; VV=116; VC=148; S=48; O=28

e(f"; @launch grid=(256,1,1) block=(576,1,1) lds={LDS_END}")
e('.amdgcn_target "amdgcn-amd-amdhsa--gfx950"')
e(".text")
e(f".globl {NAME}_kernel")
e(".p2align 8")
e(f".type {NAME}_kernel,@function")
e(f"{NAME}_kernel:")
e("    s_cmp_ge_u32 s2, 256")
e("    s_cbranch_scc1 L_end")
e("    s_load_dwordx16 s[4:19], s[0:1], 0")
e("    s_load_dwordx8 s[20:27], s[0:1], 64")
e("    v_lshrrev_b32 v1, 6, v0")
e("    v_and_b32 v2, 63, v0")
e("    v_readfirstlane_b32 s28, v1")
e("    s_lshr_b32 s29, s2, 4")
e("    s_and_b32 s30, s2, 15")
e("    s_waitcnt lgkmcnt(0)")
e("    s_mov_b32 s36, s4")
e("    s_and_b32 s37, s5, 0xffff")
e("    s_movk_i32 s38, 1152")
e("    s_mov_b32 s39, 0x20000")
e("    s_cmp_eq_u32 s28, 8")
e("    s_cbranch_scc1 L_comm")

def bf16r(dst, src):
    e(f"    v_cvt_pk_bf16_f32 {dst}, {src}, {src}")
    e(f"    v_lshlrev_b32 {dst}, 16, {dst}")
def rowsum(v, op="add", rots=(8,4,2,1)):
    for rot in rots:
        e("    s_nop 1")
        e(f"    v_{op}_f32_dpp {v}, {v}, {v} row_ror:{rot} row_mask:0xf bank_mask:0xf")
def crossrow(v, op="add"):
    e("    s_nop 1")
    for r in range(4):
        e(f"    v_readlane_b32 s{64+r}, {v}, {16*r}")
    e("    s_nop 1")
    e(f"    v_mov_b32 {v}, s64")
    for r in range(1,4):
        e(f"    v_{op}_f32 {v}, s{64+r}, {v}")
sst=[0]
def sstamp(i):
    if not STAMPS: return
    n=sst[0]; sst[0]+=1
    e("    s_cmp_lg_u32 s28, 0")
    e(f"    s_cbranch_scc1 L_ss{n}")
    e("    s_memrealtime s[84:85]")
    e("    s_waitcnt lgkmcnt(0)")
    e("    s_lshl_b32 s86, s2, 7")
    e(f"    s_add_u32 s86, s86, {(8<<20)+8*i}")
    e("    v_mov_b32 v37, s86")
    e("    v_mov_b32 v38, s84")
    e("    v_mov_b32 v39, s85")
    e("    s_mov_b64 s[88:89], exec")
    e("    s_mov_b64 exec, 1")
    e("    global_store_dwordx2 v37, v[38:39], s[26:27]")
    e("    s_mov_b64 exec, s[88:89]")
    e(f"L_ss{n}:")
def unpack(r):
    e(f"    v_lshlrev_b32 v44, 16, v{r}")
    e(f"    v_and_b32 v45, 0xffff0000, v{r}")

e("    v_lshlrev_b32 v40, 4, v2")
e("    v_add_u32 v41, 4096, v40")
e("    buffer_load_dwordx4 v[8:11], v40, s[36:39], 0 offen")
e("    buffer_load_dwordx4 v[12:15], v40, s[36:39], 0 offen offset:1024")
c("A1: wq  cb = w>>2, rows 144*(w&3) + (t>>3) + 48j")
e("    s_lshr_b32 s40, s2, 2")
e("    s_and_b32 s41, s2, 3")
e("    s_mul_i32 s42, s41, 144*8192")
e("    s_lshl_b32 s43, s40, 7")
e("    s_add_u32 s42, s42, s43")
e("    s_add_u32 s54, s10, s42")
e("    s_addc_u32 s55, s11, 0")
e("    v_lshrrev_b32 v3, 3, v0")
e("    v_and_b32 v4, 7, v0")
e("    v_lshlrev_b32 v5, 13, v3")
e("    v_lshl_add_u32 v5, v4, 4, v5")
e("    s_mul_i32 s41, s41, 144")
e("    v_add_u32 v42, s41, v3")
e("    v_lshlrev_b32 v42, 2, v42")
e("    s_cmp_ge_u32 s28, 6")
e("    s_cbranch_scc1 L_skipA1")
for j in range(3):
    e(f"    global_load_dwordx4 v[{VA+4*j}:{VA+4*j+3}], v5, s[54:55] nt")
    if j < 2: e("    v_add_u32 v5, 393216, v5")
e("L_skipA1:")
c("A2: [Wg|Wu] col-blocks 9g..9g+8, rows 36p + t/72 + 6j")
e("    v_mul_u32_u24 v3, 911, v0")
e("    v_lshrrev_b32 v3, 16, v3")
e("    v_mul_u32_u24 v4, 72, v3")
e("    v_sub_u32 v4, v0, v4")
e("    v_lshrrev_b32 v6, 3, v4")
e("    v_and_b32 v7, 7, v4")
e("    s_mul_i32 s40, s29, 9")
e("    v_add_u32 v6, s40, v6")
e("    v_cmp_gt_u32 vcc, 72, v6")
e("    v_subrev_u32 v16, 72, v6")
e("    v_mov_b32 v17, s18")
e("    v_mov_b32 v18, s16")
e("    v_cndmask_b32 v6, v16, v6, vcc")
e("    v_cndmask_b32 v17, v17, v18, vcc")
e("    v_mov_b32 v19, s19")
e("    v_mov_b32 v20, s17")
e("    v_cndmask_b32 v19, v19, v20, vcc")
e("    s_mul_i32 s44, s30, 36")
e("    v_add_u32 v22, s44, v3")
e("    v_mul_u32_u24 v23, 9216, v22")
e("    v_lshl_add_u32 v23, v6, 7, v23")
e("    v_lshl_add_u32 v23, v7, 4, v23")
e("    v_add_co_u32 v16, vcc, v17, v23")
e("    v_addc_co_u32 v17, vcc, 0, v19, vcc")
e("    v_lshlrev_b32 v46, 2, v22")
e("    v_mul_u32_u24 v47, 2304, v3")
e("    v_lshl_add_u32 v47, v4, 5, v47")
e("    v_lshlrev_b32 v1, 2, v3")
e("    s_mov_b32 s48, 55296")
e("    s_cmp_eq_u32 s28, 7")
e("    s_cbranch_scc1 L_skipA")
e("    s_movk_i32 s49, 432")
e("    v_cmp_gt_u32 vcc, s49, v0")
e("    s_and_saveexec_b64 s[46:47], vcc")
for j in range(6):
    e(f"    global_load_dwordx4 v[{VA+12+4*j}:{VA+12+4*j+3}], v[16:17], off nt")
    if j < 5:
        e("    v_add_co_u32 v16, vcc, s48, v16")
        e("    v_addc_co_u32 v17, vcc, 0, v17, vcc")
e("    s_mov_b64 exec, s[46:47]")
e("L_skipA:")
c("LN (per wave)")
e("    s_cmp_eq_u32 s28, 7")
e("    s_cbranch_scc1 L_w7x")
e("    s_cmp_eq_u32 s28, 6")
e("    s_cbranch_scc1 L_w6x")
e("    s_waitcnt vmcnt(9)")
e("    s_branch L_xok")
e("L_w6x:")
e("    s_waitcnt vmcnt(6)")
e("    s_branch L_xok")
e("L_w7x:")
e("    s_waitcnt vmcnt(0)")
e("L_xok:")
e("    v_cmp_gt_u32 vcc, 8, v2")
e("    s_nop 1")
e("    v_cndmask_b32 v45, 0, 1.0, vcc")
for k in range(8):
    e(f"    v_lshlrev_b32 v{16+2*k}, 16, v{8+k}")
    e(f"    v_and_b32 v{17+2*k}, 0xffff0000, v{8+k}")
e("    v_add_f32 v32, v16, v17")
for k in range(2,16):
    e(f"    v_add_f32 v32, v32, v{16+k}")
rowsum("v32"); crossrow("v32")
e("    v_mul_f32 v32, 0x3ae38e39, v32")
e("    v_sub_f32 v34, v16, v32")
e("    v_mul_f32 v33, v34, v34")
for k in range(1,16):
    e(f"    v_sub_f32 v34, v{16+k}, v32")
    if k >= 8: e(f"    v_mul_f32 v34, v34, v45")
    e(f"    v_fmac_f32 v33, v34, v34")
rowsum("v33"); crossrow("v33")
e("    v_mul_f32 v33, 0x3ae38e39, v33")
bf16r("v32","v32"); bf16r("v33","v33")
e("    v_add_f32 v33, 0x3727c5ac, v33")
bf16r("v33","v33")
e("    v_sqrt_f32 v33, v33")
e("    s_nop 0")
bf16r("v33","v33")
e("    v_rcp_f32 v33, v33")
e("    s_nop 0")
for k in range(16):
    e(f"    v_sub_f32 v{16+k}, v{16+k}, v32")
    bf16r(f"v{16+k}", f"v{16+k}")
    e(f"    v_mul_f32 v{16+k}, v{16+k}, v33")
    bf16r(f"v{16+k}", f"v{16+k}")
e("    v_lshlrev_b32 v4, 5, v2")
e(f"    ds_write_b128 v4, v[16:19] offset:{XN}")
e(f"    ds_write_b128 v4, v[20:23] offset:{XN+16}")
e("    v_cmp_gt_u32 vcc, 8, v2")
e("    s_and_saveexec_b64 s[46:47], vcc")
e(f"    ds_write_b128 v4, v[24:27] offset:{XN+2048}")
e(f"    ds_write_b128 v4, v[28:31] offset:{XN+2064}")
e("    s_mov_b64 exec, s[46:47]")
c("---- A1 compute (waves 0..5)")
e("    s_cmp_ge_u32 s28, 6")
e("    s_cbranch_scc1 L_skipA1c")
e("    s_waitcnt lgkmcnt(0)")
for j in range(3):
    e(f"    ds_read_b32 v{16+j}, v42 offset:{XN+192*j}")
for i in range(8):
    e(f"    v_mov_b32 v{28+i}, 0")
e("    s_waitcnt lgkmcnt(0)")
for j in range(3):
    e(f"    s_waitcnt vmcnt({8-j})")
    for d in range(4):
        unpack(VA+4*j+d)
        e(f"    v_fmac_f32 v{28+2*d}, v44, v{16+j}")
        e(f"    v_fmac_f32 v{29+2*d}, v45, v{16+j}")
e("    s_nop 1")
for i in range(8):
    e(f"    v_add_f32_dpp v{28+i}, v{28+i}, v{28+i} row_ror:8 row_mask:0xf bank_mask:0xf")
e("    s_nop 1")
for i in range(4):
    e(f"    v_permlane32_swap_b32 v{28+i}, v{32+i}")
for i in range(4):
    e(f"    v_add_f32 v{28+i}, v{28+i}, v{32+i}")
e("    s_nop 1")
for i in range(2):
    e(f"    v_permlane16_swap_b32 v{28+i}, v{30+i}")
for i in range(2):
    e(f"    v_add_f32 v{28+i}, v{28+i}, v{30+i}")
e("    v_and_b32 v3, 7, v2")
e("    v_lshlrev_b32 v3, 5, v3")
e("    v_bfe_u32 v4, v2, 4, 1")
e("    v_lshl_add_u32 v3, v4, 3, v3")
e("    v_lshrrev_b32 v4, 5, v2")
e("    v_lshl_add_u32 v3, v4, 4, v3")
e("    s_lshl_b32 s48, s28, 8")
e("    v_add_u32 v3, s48, v3")
e(f"    ds_write_b64 v3, v[28:29] offset:{RA1}")
e("L_skipA1c:")
e("    s_waitcnt lgkmcnt(0)")
e("    s_barrier   ; Ba")
c("publish A1 partial: wave 0, lanes < 22")
e("    s_cmp_lg_u32 s28, 0")
e("    s_cbranch_scc1 L_skipP1")
e("    v_mov_b32 v17, 0")
e(f"    ds_read_b32 v11, v17 offset:{NONCE}")
e("    v_cmp_gt_u32 vcc, 22, v0")
e("    s_and_saveexec_b64 s[46:47], vcc")
e("    v_mul_u32_u24 v6, 12, v0")
for r in range(6):
    for m in range(3):
        e(f"    ds_read_b32 v{16+4*r+m}, v6 offset:{RA1+256*r+4*m}")
e(f"    s_mul_i32 s48, s2, 352")
if PA1: e(f"    s_add_u32 s48, s48, {PA1}")
e(f"    s_add_u32 s50, s26, s48")
e(f"    s_addc_u32 s51, s27, 0")
e("    v_lshlrev_b32 v4, 4, v0")
e("    s_waitcnt lgkmcnt(0)")
for m in range(3):
    e(f"    v_add_f32 v{8+m}, v{16+m}, v{20+m}")
    for r in range(2,6):
        e(f"    v_add_f32 v{8+m}, v{8+m}, v{16+4*r+m}")
e("    global_store_dwordx4 v4, v[8:11], s[50:51] sc0 sc1")
e("    s_mov_b64 exec, s[46:47]")
e("L_skipP1:")
c("K, V")
e("    s_lshl_b32 s45, s29, 23")
e("    s_lshl_b32 s48, s30, 16")
e("    s_add_u32 s45, s45, s48")
e("    s_lshl_b32 s48, s28, 13")
e("    s_add_u32 s45, s45, s48")
e("    s_add_u32 s45, s45, 7340032")
e("    s_add_u32 s32, s6, s45")
e("    s_addc_u32 s33, s7, 0")
e("    s_add_u32 s34, s8, s45")
e("    s_addc_u32 s35, s9, 0")
for j in range(8):
    e(f"    global_load_dwordx4 v[{VK+4*j}:{VK+4*j+3}], v{40 if j<4 else 41}, s[32:33] offset:{(j%4)*1024} nt")
for j in range(8):
    e(f"    global_load_dwordx4 v[{VV+4*j}:{VV+4*j+3}], v{40 if j<4 else 41}, s[34:35] offset:{(j%4)*1024} nt")
c("C weights: rows (t/72)+7j of [wo rows 16w.. | Wd rows 18w..]")
e("    v_mul_u32_u24 v3, 911, v0")
e("    v_lshrrev_b32 v3, 16, v3")
e("    v_mul_u32_u24 v4, 72, v3")
e("    v_sub_u32 v4, v0, v4")
e("    s_mul_i32 s48, s2, 16*1152")
e("    s_add_u32 s50, s12, s48")
e("    s_addc_u32 s51, s13, 0")
e("    s_mul_i32 s48, s2, 18*1152")
e("    s_add_u32 s52, s20, s48")
e("    s_addc_u32 s53, s21, 0")
e("    s_sub_u32 s52, s52, 16*1152")
e("    s_subb_u32 s53, s53, 0")
e("    v_mov_b32 v24, s50")
e("    v_mov_b32 v25, s51")
e("    v_mov_b32 v26, s52")
e("    v_mov_b32 v27, s53")
for j in range(5):
    e(f"    v_add_u32 v5, {7*j}, v3")
    e("    v_min_u32 v5, 33, v5")
    e("    v_cmp_gt_u32 vcc, 16, v5")
    e("    v_mul_u32_u24 v6, 1152, v5")
    e("    v_lshl_add_u32 v6, v4, 4, v6")
    e("    v_cndmask_b32 v28, v26, v24, vcc")
    e("    v_cndmask_b32 v29, v27, v25, vcc")
    e("    v_add_co_u32 v16, vcc, v28, v6")
    e("    v_addc_co_u32 v17, vcc, 0, v29, vcc")
    e(f"    global_load_dwordx4 v[{VC+4*j}:{VC+4*j+3}], v[16:17], off nt")
c("---- A2 compute (waves 0..6)")
e("    s_cmp_eq_u32 s28, 7")
e("    s_cbranch_scc1 L_skipA2")
e("    s_movk_i32 s49, 432")
e("    v_cmp_gt_u32 vcc, s49, v0")
e("    s_and_saveexec_b64 s[46:47], vcc")
for j in range(6):
    e(f"    ds_read_b32 v{16+j}, v46 offset:{XN+24*j}")
for i in range(8):
    e(f"    v_mov_b32 v{28+i}, 0")
e("    s_waitcnt lgkmcnt(0)")
for j in range(6):
    e(f"    s_waitcnt vmcnt({26-j})")
    for d in range(4):
        unpack(VA+12+4*j+d)
        e(f"    v_fmac_f32 v{28+2*d}, v44, v{16+j}")
        e(f"    v_fmac_f32 v{29+2*d}, v45, v{16+j}")
e(f"    ds_write_b128 v47, v[28:31] offset:{RED}")
e(f"    ds_write_b128 v47, v[32:35] offset:{RED+16}")
e("    s_mov_b64 exec, s[46:47]")
e("    s_waitcnt lgkmcnt(0)")
e("    v_mov_b32 v17, 0")
e("    v_mov_b32 v16, 1")
e("    s_mov_b64 exec, 1")
e(f"    ds_add_u32 v17, v16 offset:{CNT}")
e("    s_mov_b64 exec, -1")
e("L_skipA2:")
c("publish A2 partial: threads < 198 (waves 0..3) once all 7 waves have written")
e("    s_cmp_ge_u32 s28, 4")
e("    s_cbranch_scc1 L_skipPA0")
e("    v_mov_b32 v17, 0")
e("L_spin:")
e(f"    ds_read_b32 v16, v17 offset:{CNT}")
e("    s_waitcnt lgkmcnt(0)")
e("    v_readfirstlane_b32 s48, v16")
e("    s_cmp_lt_u32 s48, 7")
e("    s_cbranch_scc1 L_spin")
e(f"    ds_read_b32 v11, v17 offset:{NONCE}")
e("    s_movk_i32 s48, 198")
e("    v_cmp_gt_u32 vcc, s48, v0")
e("    s_and_saveexec_b64 s[46:47], vcc")
e("    v_mul_u32_u24 v5, 745, v0")
e("    v_lshrrev_b32 v5, 14, v5")
e("    v_mul_u32_u24 v6, 22, v5")
e("    v_sub_u32 v6, v0, v6")
e("    v_mul_u32_u24 v6, 12, v6")
e("    v_lshl_add_u32 v6, v5, 8, v6")
for r in range(6):
    for m in range(3):
        e(f"    ds_read_b32 v{16+4*r+m}, v6 offset:{RED+2304*r+4*m}")
e(f"    s_mul_i32 s48, s2, 3168")
e(f"    s_add_u32 s48, s48, {PA2}")
e(f"    s_add_u32 s50, s26, s48")
e(f"    s_addc_u32 s51, s27, 0")
e("    v_lshlrev_b32 v4, 4, v0")
e("    s_waitcnt lgkmcnt(0)")
for m in range(3):
    e(f"    v_add_f32 v{8+m}, v{16+m}, v{20+m}")
    for r in range(2,6):
        e(f"    v_add_f32 v{8+m}, v{8+m}, v{16+4*r+m}")
e("    global_store_dwordx4 v4, v[8:11], s[50:51] sc0 sc1")
e("    s_mov_b64 exec, s[46:47]")
e("L_skipPA0:")
sstamp(3)
e("    s_barrier   ; B3 (q ready)")
sstamp(4)
c("---- scores")
e("    v_and_b32 v3, 15, v2")
e("    v_lshlrev_b32 v3, 4, v3")
e(f"    ds_read_b128 v[8:11], v3 offset:{Q}")
e(f"    ds_read_b128 v[12:15], v3 offset:{Q+256}")
e("    s_waitcnt lgkmcnt(0)")
e("    s_waitcnt vmcnt(13)")
sstamp(6)
for j in range(8):
    for d in range(4):
        for h in range(2):
            q = 8+4*h
            src = "0" if d == 0 else f"v{S+2*j+h}"
            e(f"    v_dot2_f32_bf16 v{S+2*j+h}, v{VK+4*j+d}, v{q+d}, {src}")
for rot in (8,4,2,1):
    for k in range(16):
        e(f"    v_add_f32_dpp v{S+k}, v{S+k}, v{S+k} row_ror:{rot} row_mask:0xf bank_mask:0xf")
c("bf16 roundings as in the reference (scores, scaled scores), then log2e")
e("    v_mov_b32 v16, 0x3db504f3")
e("    v_mov_b32 v17, 0x3fb8aa3b")
for k in range(0,16,2):
    e(f"    v_cvt_pk_bf16_f32 v64, v{S+k}, v{S+k+1}")
    e(f"    v_lshlrev_b32 v{S+k}, 16, v64")
    e(f"    v_and_b32 v{S+k+1}, 0xffff0000, v64")
    e(f"    v_pk_mul_f32 v[{S+k}:{S+k+1}], v[{S+k}:{S+k+1}], v[16:17] op_sel_hi:[1,0]")
    e(f"    v_cvt_pk_bf16_f32 v64, v{S+k}, v{S+k+1}")
    e(f"    v_lshlrev_b32 v{S+k}, 16, v64")
    e(f"    v_and_b32 v{S+k+1}, 0xffff0000, v64")
    e(f"    v_pk_mul_f32 v[{S+k}:{S+k+1}], v[{S+k}:{S+k+1}], v[16:17] op_sel:[0,1] op_sel_hi:[1,1]")
for h in range(2):
    e(f"    v_max3_f32 v{64+h}, v{S+h}, v{S+2+h}, v{S+4+h}")
    e(f"    v_max3_f32 v{66+h}, v{S+6+h}, v{S+8+h}, v{S+10+h}")
    e(f"    v_max3_f32 v{64+h}, v{64+h}, v{S+12+h}, v{S+14+h}")
    e(f"    v_max_f32 v{64+h}, v{64+h}, v{66+h}")
c("cross-row max of both heads: swap trick -> lanes<32: head0 over (r, r+2) ...")
e("    s_nop 1")
e("    v_permlane32_swap_b32 v64, v65")
e("    v_max_f32 v64, v64, v65")
e("    v_mov_b32 v65, v64")
e("    s_nop 1")
e("    v_permlane16_swap_b32 v64, v65")
e("    v_max_f32 v64, v64, v65")
e("    s_lshl_b32 s48, s28, 3")
e("    v_lshrrev_b32 v17, 5, v2")
e("    v_lshl_add_u32 v17, v17, 2, s48")
e("    s_mov_b64 s[46:47], exec")
e("    s_mov_b32 exec_lo, 1")
e("    s_mov_b32 exec_hi, 1")
e(f"    ds_write_b32 v17, v64 offset:{WMAX}")
e("    s_waitcnt lgkmcnt(0)")
e("    s_mov_b32 exec_hi, 0")
e("    v_mov_b32 v17, 0")
e("    v_mov_b32 v16, 1")
e(f"    ds_add_u32 v17, v16 offset:{CNT2}")
e("    s_mov_b64 exec, s[46:47]")
e("    v_mov_b32 v17, 0")
e("L_spin2:")
e(f"    ds_read_b32 v16, v17 offset:{CNT2}")
e("    s_waitcnt lgkmcnt(0)")
e("    v_readfirstlane_b32 s48, v16")
e("    s_cmp_lt_u32 s48, 8")
e("    s_cbranch_scc1 L_spin2")
for k in range(4):
    e(f"    ds_read_b128 v[{68+4*k}:{68+4*k+3}], v17 offset:{WMAX+16*k}")
e("    s_waitcnt lgkmcnt(0)")
for h in range(2):
    e(f"    v_max3_f32 v{66+h}, v{68+h}, v{70+h}, v{72+h}")
    e(f"    v_max3_f32 v{64+h}, v{74+h}, v{76+h}, v{78+h}")
    e(f"    v_max3_f32 v{66+h}, v{66+h}, v{80+h}, v{82+h}")
    e(f"    v_max_f32 v{66+h}, v{66+h}, v{64+h}")
for k in range(16):
    e(f"    v_sub_f32 v{S+k}, v{S+k}, v{66+(k%2)}")
for k in range(16):
    e(f"    v_exp_f32 v{S+k}, v{S+k}")
e("    s_nop 0")
for h in range(2):
    e(f"    v_add_f32 v{64+h}, v{S+h}, v{S+2+h}")
    for j in range(2,8):
        e(f"    v_add_f32 v{64+h}, v{64+h}, v{S+2*j+h}")
e("    s_nop 1")
e("    v_permlane32_swap_b32 v64, v65")
e("    v_add_f32 v64, v64, v65")
e("    v_mov_b32 v65, v64")
e("    s_nop 1")
e("    v_permlane16_swap_b32 v64, v65")
e("    v_add_f32 v64, v64, v65")
e("    s_lshl_b32 s48, s28, 3")
e("    v_lshrrev_b32 v17, 5, v2")
e("    v_lshl_add_u32 v17, v17, 2, s48")
e("    s_mov_b64 s[46:47], exec")
e("    s_mov_b32 exec_lo, 1")
e("    s_mov_b32 exec_hi, 1")
e(f"    ds_write_b32 v17, v64 offset:{WL}")
e("    s_mov_b64 exec, s[46:47]")
c("---- PV")
for j in range(8):
    e(f"    s_waitcnt vmcnt({12-j})")
    for d in range(4):
        unpack(VV+4*j+d)
        for h in range(2):
            a = O+8*h+2*d
            sel = "op_sel:[0,0,0] op_sel_hi:[1,0,1]" if h == 0 else "op_sel:[0,1,0] op_sel_hi:[1,1,1]"
            if j == 0:
                e(f"    v_pk_mul_f32 v[{a}:{a+1}], v[44:45], v[{S}:{S+1}] " + ("op_sel:[0,0] op_sel_hi:[1,0]" if h == 0 else "op_sel:[0,1] op_sel_hi:[1,1]"))
            else:
                e(f"    v_pk_fma_f32 v[{a}:{a+1}], v[44:45], v[{S+2*j}:{S+2*j+1}], v[{a}:{a+1}] {sel}")
e("    s_nop 1")
for i in range(8):
    e(f"    v_permlane32_swap_b32 v{O+i}, v{O+8+i}")
for i in range(8):
    e(f"    v_add_f32 v{O+i}, v{O+i}, v{O+8+i}")
e("    s_nop 1")
for i in range(4):
    e(f"    v_permlane16_swap_b32 v{O+i}, v{O+4+i}")
for i in range(4):
    e(f"    v_add_f32 v{O+i}, v{O+i}, v{O+4+i}")
e("    v_and_b32 v3, 15, v2")
e("    v_lshlrev_b32 v3, 5, v3")
e("    v_bfe_u32 v4, v2, 4, 1")
e("    v_lshl_add_u32 v3, v4, 4, v3")
e("    v_lshrrev_b32 v4, 5, v2")
e("    v_lshl_add_u32 v3, v4, 9, v3")
e("    s_lshl_b32 s48, s28, 10")
e("    v_add_u32 v3, s48, v3")
e(f"    ds_write_b128 v3, v[{O}:{O+3}] offset:{RED}")
e("    s_waitcnt lgkmcnt(0)")
sstamp(7)
e("    s_barrier   ; B4")
e("    s_barrier   ; B5 (o/h ready)")
c("---- phase C")
for j in range(5):
    e(f"    ds_read_b32 v{8+j}, v1 offset:{MULT+28*j}")
e("    s_waitcnt lgkmcnt(0)")
for j in range(5):
    e(f"    s_waitcnt vmcnt({4-j})")
    for d in range(4):
        unpack(VC+4*j+d)
        a = O+2*d
        if j == 0:
            e(f"    v_mul_f32 v{a}, v44, v{8+j}")
            e(f"    v_mul_f32 v{a+1}, v45, v{8+j}")
        else:
            e(f"    v_fmac_f32 v{a}, v44, v{8+j}")
            e(f"    v_fmac_f32 v{a+1}, v45, v{8+j}")
e("    s_movk_i32 s49, 504")
e("    v_cmp_gt_u32 vcc, s49, v0")
e("    s_and_saveexec_b64 s[46:47], vcc")
e("    s_cbranch_execz L_skipC")
e(f"    ds_write_b128 v47, v[{O}:{O+3}] offset:{RED}")
e(f"    ds_write_b128 v47, v[{O+4}:{O+7}] offset:{RED+16}")
e("L_skipC:")
e("    s_mov_b64 exec, s[46:47]")
e("    s_waitcnt lgkmcnt(0)")
e("    s_barrier   ; B6a")
c("second-level reduce + tagged publish by threads < 192 (waves 0..2)")
e("    s_cmp_ge_u32 s28, 3")
e("    s_cbranch_scc1 L_skipC2")
e("    v_mov_b32 v17, 0")
e(f"    ds_read_b32 v67, v17 offset:{NONCE}")
e("    v_mul_u32_u24 v8, 12, v0")
for r in range(7):
    for m in range(3):
        e(f"    ds_read_b32 v{72+4*r+m}, v8 offset:{RED+2304*r+4*m}")
e(f"    s_mul_i32 s48, s2, 3072")
e(f"    s_add_u32 s48, s48, {PC}")
e(f"    s_add_u32 s50, s26, s48")
e(f"    s_addc_u32 s51, s27, 0")
e("    v_lshlrev_b32 v4, 4, v0")
e("    s_waitcnt lgkmcnt(0)")
for m in range(3):
    e(f"    v_add_f32 v{64+m}, v{72+m}, v{76+m}")
    for r in range(2,7):
        e(f"    v_add_f32 v{64+m}, v{64+m}, v{72+4*r+m}")
e("    global_store_dwordx4 v4, v[64:67], s[50:51] sc0 sc1")
e("L_skipC2:")
sstamp(12)
e("    s_endpgm")

def stamp(i):
    if not STAMPS: return
    e("    s_memrealtime s[76:77]")
    e("    s_waitcnt lgkmcnt(0)")
    e("    v_mov_b32 v52, s76")
    e("    v_mov_b32 v53, s77")
    e("    s_lshl_b32 s78, s2, 7")
    e(f"    s_add_u32 s78, s78, {(8<<20)+8*i}")
    e("    v_mov_b32 v54, s78")
    e("    s_mov_b64 s[80:81], exec")
    e("    s_mov_b64 exec, 1")
    e("    global_store_dwordx2 v54, v[52:53], s[26:27]")
    e("    s_mov_b64 exec, s[80:81]")
pc=[0]
def gather(addrs, regs, base):
    n = pc[0]; pc[0]+=1
    e("    s_mov_b32 s70, 0")
    e(f"L_g{n}:")
    for a,r in zip(addrs,regs):
        e(f"    global_load_dwordx4 v[{r}:{r+3}], v{a}, {base} sc0 sc1")
    e("    s_waitcnt vmcnt(0)")
    e(f"    v_xor_b32 v62, v63, v{regs[0]+3}")
    for r in regs[1:]:
        e(f"    v_xor_b32 v61, v63, v{r+3}")
        e("    v_or_b32 v62, v62, v61")
    e("    v_cmp_ne_u32 vcc, 0, v62")
    e(f"    s_cbranch_vccz L_gd{n}")
    e("    s_sleep 1")
    e("    s_add_u32 s70, s70, 1")
    e("    s_cmp_lt_u32 s70, 0x100000")
    e(f"    s_cbranch_scc1 L_g{n}")
    e(f"L_gd{n}:")

e("L_comm:")
stamp(0)
c("nonce: WG 0 installs its clock value in d_debug[0]; the others poll it")
e("    s_memrealtime s[74:75]")
e("    v_mov_b32 v4, 0")
e("    v_mov_b32 v5, 0")
e("    v_mov_b32 v6, 0")
e("    v_mov_b32 v7, 0")
e("    v_lshlrev_b32 v3, 4, v2")
e("    v_cmp_gt_u32 vcc, 20, v2")
e("    s_and_saveexec_b64 s[46:47], vcc")
e(f"    ds_write_b128 v3, v[4:7] offset:{MULT}")
e("    s_mov_b64 exec, s[46:47]")
e("    s_waitcnt lgkmcnt(0)")
e("    s_or_b32 s74, s74, 1")
e("    v_mov_b32 v8, s74")
e("    s_mov_b64 s[46:47], exec")
e("    s_mov_b64 exec, 1")
e("    s_cmp_lg_u32 s2, 0")
e("    s_cbranch_scc1 L_npoll")
e("    global_store_dword v4, v8, s[24:25] sc0 sc1")
e("    v_mov_b32 v10, v8")
e("    s_branch L_ndone")
e("L_npoll:")
e("    s_mov_b32 s70, 0")
e("L_np:")
e("    global_load_dword v10, v4, s[24:25] sc0 sc1")
e("    s_waitcnt vmcnt(0)")
e("    v_readfirstlane_b32 s71, v10")
e("    s_cmp_lg_u32 s71, 0")
e("    s_cbranch_scc1 L_ndone")
e("    s_add_u32 s70, s70, 1")
e("    s_cmp_lt_u32 s70, 0x100000")
e("    s_cbranch_scc1 L_np")
e("L_ndone:")
e("    s_nop 0")
e("    v_readfirstlane_b32 s74, v10")
e("    s_mov_b64 exec, s[46:47]")
e("    v_mov_b32 v63, s74")
e("    v_mov_b32 v5, 0")
e(f"    ds_write_b32 v5, v63 offset:{NONCE}")
e("    s_waitcnt lgkmcnt(0)")
stamp(1)
c("q gather addresses: 4 col-blocks x 22 granules x 4 partials")
for k in range(2):
    e(f"    v_add_u32 v4, {64*k}, v2")
    e("    v_min_u32 v4, 87, v4")
    e("    v_mul_u32_u24 v5, 745, v4")
    e("    v_lshrrev_b32 v5, 14, v5")
    e("    v_mul_u32_u24 v6, 22, v5")
    e("    v_sub_u32 v6, v4, v6")
    e("    s_lshl_b32 s48, s29, 2")
    e("    v_add_u32 v7, s48, v5")
    e("    v_mul_u32_u24 v10, 1408, v7")
    e("    v_lshl_add_u32 v10, v6, 4, v10")
    e(f"    v_mov_b32 v{28+2*k}, v5")
    e(f"    v_mov_b32 v{29+2*k}, v6")
    for pp in range(4):
        e(f"    v_add_u32 v{20+4*k+pp}, {PA1+352*pp}, v10")
e("    s_barrier   ; Ba")
stamp(2)
gather([20+i for i in range(8)], [64+4*i for i in range(8)], "s[26:27]")
for k in range(2):
    for pp in range(1,4):
        for m in range(3):
            e(f"    v_add_f32 v{64+16*k+m}, v{64+16*k+m}, v{64+16*k+4*pp+m}")
    e(f"    v_cvt_pk_bf16_f32 v64, v{64+16*k}, v{64+16*k}")
    e(f"    v_cvt_pk_bf16_f32 v65, v{65+16*k}, v{65+16*k}")
    e(f"    v_cvt_pk_bf16_f32 v66, v{66+16*k}, v{66+16*k}")
    e(f"    v_mul_u32_u24 v6, 3, v{29+2*k}")
    e(f"    v_lshl_add_u32 v7, v{28+2*k}, 6, v6")
    e("    v_lshlrev_b32 v7, 1, v7")
    e(f"    ds_write_b16 v7, v64 offset:{Q}")
    e("    v_cmp_gt_u32 vcc, 63, v6")
    e("    s_and_saveexec_b64 s[46:47], vcc")
    e(f"    ds_write_b16 v7, v65 offset:{Q+2}")
    e(f"    ds_write_b16 v7, v66 offset:{Q+4}")
    e("    s_mov_b64 exec, s[46:47]")
e("    s_waitcnt lgkmcnt(0)")
stamp(5)
e("    s_barrier   ; B3")
c("addresses for the o gather (v20,v21 ; LDS v22,v23) and the h gather (v24..39, slot v44)")
e("    s_lshr_b32 s48, s2, 3")
e("    s_and_b32 s48, s48, 1")
e("    s_mul_i32 s48, s48, 768")
e("    s_and_b32 s49, s2, 7")
e("    s_mul_i32 s49, s49, 96")
e("    s_add_u32 s48, s48, s49")
e("    s_mul_i32 s49, s29, 16*1536")
e("    s_add_u32 s48, s48, s49")
e(f"    s_add_u32 s48, s48, {PB}")
for k in range(2):
    e(f"    v_add_u32 v4, {64*k}, v2")
    e("    v_min_u32 v4, 95, v4")
    e("    v_mul_u32_u24 v5, 171, v4")
    e("    v_lshrrev_b32 v5, 10, v5")
    e("    v_mul_u32_u24 v6, 6, v5")
    e("    v_sub_u32 v6, v4, v6")
    e(f"    v_mul_u32_u24 v{20+k}, 1536, v5")
    e(f"    v_lshl_add_u32 v{20+k}, v6, 4, v{20+k}")
    e(f"    v_add_u32 v{20+k}, s48, v{20+k}")
    e("    v_mul_u32_u24 v6, 12, v6")
    e("    v_mul_u32_u24 v7, 80, v5")
    e(f"    v_add_u32 v{22+k}, v6, v7")
e("    s_mul_i32 s48, s2, 18")
e("    v_and_b32 v4, 31, v2")
e("    v_min_u32 v4, 17, v4")
e("    v_add_u32 v4, s48, v4")
e("    v_lshrrev_b32 v5, 6, v4")
e("    v_and_b32 v6, 63, v4")
e("    v_lshrrev_b32 v7, 5, v2")
e("    v_mul_u32_u24 v7, 72, v7")
e("    v_add_u32 v7, v7, v5")
e("    v_mul_u32_u24 v8, 57, v7")
e("    v_lshrrev_b32 v8, 9, v8")
e("    v_mul_u32_u24 v9, 9, v8")
e("    v_sub_u32 v9, v7, v9")
e("    v_mul_u32_u24 v10, 50688, v8")
e("    v_mul_u32_u24 v9, 352, v9")
e("    v_add_u32 v10, v10, v9")
e("    v_mul_u32_u24 v11, 21846, v6")
e("    v_lshrrev_b32 v11, 16, v11")
e("    v_lshl_add_u32 v10, v11, 4, v10")
e("    v_mul_u32_u24 v11, 3, v11")
e("    v_sub_u32 v44, v6, v11")
for pp in range(16):
    e(f"    v_add_u32 v{24+pp}, {PA2+3168*pp}, v10")
c("h gather (off the critical path while the streamers do attention)")
gather([24+pp for pp in range(16)],[80+4*pp for pp in range(16)],"s[26:27]")
for pp in range(1,16):
    for m in range(3):
        e(f"    v_add_f32 v{80+m}, v{80+m}, v{80+4*pp+m}")
e("    v_cmp_eq_u32 vcc, 1, v44")
e("    s_nop 1")
e("    v_cndmask_b32 v80, v80, v81, vcc")
e("    v_cmp_eq_u32 vcc, 2, v44")
e("    s_nop 1")
e("    v_cndmask_b32 v80, v80, v82, vcc")
bf16r("v80","v80")
e("    s_nop 1")
e("    v_permlane32_swap_b32 v80, v81")
e("    v_max_f32 v80, 0, v80")
e("    v_mul_f32 v80, v80, v81")
bf16r("v80","v80")
e("    v_lshlrev_b32 v4, 2, v2")
e("    v_cmp_gt_u32 vcc, 18, v2")
e("    s_and_saveexec_b64 s[46:47], vcc")
e(f"    ds_write_b32 v4, v80 offset:{MULT+64}")
e("    s_mov_b64 exec, s[46:47]")
stamp(9)
e("    s_barrier   ; B4")
stamp(8)
c("reduce 8 wave partials -> SL[hh][s][20] -> tagged publish B (96 granules)")
e("    v_lshlrev_b32 v4, 4, v2")
for k in range(8):
    e(f"    ds_read_b128 v[{64+4*k}:{64+4*k+3}], v4 offset:{RED+1024*k}")
e("    v_mov_b32 v5, 0")
for k in range(4):
    e(f"    ds_read_b128 v[{96+4*k}:{96+4*k+3}], v5 offset:{WMAX+16*k}")
    e(f"    ds_read_b128 v[{112+4*k}:{112+4*k+3}], v5 offset:{WL+16*k}")
e("    s_waitcnt lgkmcnt(0)")
for k in range(1,8):
    for m in range(4):
        e(f"    v_add_f32 v{64+m}, v{64+m}, v{64+4*k+m}")
for h in range(2):
    e(f"    v_max_f32 v{16+2*h}, v{96+h}, v{98+h}")
    e(f"    v_add_f32 v{17+2*h}, v{112+h}, v{114+h}")
    for k in range(2,8):
        e(f"    v_max_f32 v{16+2*h}, v{16+2*h}, v{96+2*k+h}")
        e(f"    v_add_f32 v{17+2*h}, v{17+2*h}, v{112+2*k+h}")
e("    v_cmp_le_u32 vcc, 32, v2")
e("    s_nop 1")
e("    v_cndmask_b32 v16, v16, v18, vcc")
e("    v_cndmask_b32 v17, v17, v19, vcc")
e("    v_lshrrev_b32 v6, 5, v2")
e("    v_mul_u32_u24 v6, 640, v6")
e("    v_bfe_u32 v7, v2, 2, 3")
e("    v_mul_u32_u24 v7, 80, v7")
e("    v_add_u32 v6, v6, v7")
e("    v_and_b32 v7, 3, v2")
e("    v_lshl_add_u32 v8, v7, 4, v6")
e(f"    ds_write_b128 v8, v[64:67] offset:{SL}")
e(f"    ds_write_b64 v6, v[16:17] offset:{SL+64}")
e("    s_waitcnt lgkmcnt(0)")
e(f"    s_mul_i32 s48, s2, 1536")
e(f"    s_add_u32 s48, s48, {PB}")
e(f"    s_add_u32 s50, s26, s48")
e(f"    s_addc_u32 s51, s27, 0")
for k in range(2):
    e(f"    v_add_u32 v4, {64*k}, v2")
    e("    v_min_u32 v4, 95, v4")
    e("    v_mul_u32_u24 v5, 171, v4")
    e("    v_lshrrev_b32 v5, 10, v5")
    e("    v_mul_u32_u24 v6, 6, v5")
    e("    v_sub_u32 v6, v4, v6")
    e("    v_mul_u32_u24 v6, 12, v6")
    e("    v_mul_u32_u24 v7, 80, v5")
    e("    v_add_u32 v6, v6, v7")
    for m in range(3):
        e(f"    ds_read_b32 v{8+4*k+m}, v6 offset:{SL+4*m}")
    e(f"    v_mov_b32 v{11+4*k}, v63")
    e(f"    v_lshlrev_b32 v{16+k}, 4, v4")
e("    s_waitcnt lgkmcnt(0)")
for k in range(2):
    e(f"    global_store_dwordx4 v{16+k}, v[{8+4*k}:{11+4*k}], s[50:51] sc0 sc1")
gather([20,21],[64,68],"s[26:27]")
stamp(10)
for k in range(2):
    for m in range(3):
        e(f"    ds_write_b32 v{22+k}, v{64+4*k+m} offset:{T16+4*m}")
e("    s_waitcnt lgkmcnt(0)")
e("    v_lshrrev_b32 v4, 2, v2")
e("    v_mul_u32_u24 v4, 80, v4")
e(f"    ds_read_b64 v[12:13], v4 offset:{T16+64}")
e("    v_and_b32 v5, 3, v2")
e("    v_lshl_add_u32 v4, v5, 4, v4")
e(f"    ds_read_b128 v[8:11], v4 offset:{T16}")
e("    s_waitcnt lgkmcnt(0)")
e("    v_mov_b32 v14, v12")
rowsum("v14","max",(8,4))
crossrow("v14","max")
e("    v_sub_f32 v14, v12, v14")
e("    v_exp_f32 v14, v14")
e("    s_nop 0")
e("    v_mul_f32 v15, v14, v13")
rowsum("v15","add",(8,4))
crossrow("v15","add")
for m in range(4):
    e(f"    v_mul_f32 v{8+m}, v{8+m}, v14")
for m in range(4):
    rowsum(f"v{8+m}","add",(8,4))
e("    v_lshrrev_b32 v6, 4, v2")
e("    v_lshlrev_b32 v6, 6, v6")
e("    v_lshl_add_u32 v6, v5, 4, v6")
e("    v_and_b32 v7, 12, v2")
e("    v_cmp_eq_u32 vcc, 0, v7")
e("    s_and_saveexec_b64 s[46:47], vcc")
e(f"    ds_write_b128 v6, v[8:11] offset:{SL}")
e("    s_mov_b64 exec, s[46:47]")
e("    s_waitcnt lgkmcnt(0)")
e("    v_lshlrev_b32 v5, 4, v5")
for r in range(4):
    e(f"    ds_read_b128 v[{64+4*r}:{64+4*r+3}], v5 offset:{SL+64*r}")
e("    v_rcp_f32 v15, v15")
e("    s_waitcnt lgkmcnt(0)")
for m in range(4):
    e(f"    v_add_f32 v{64+m}, v{64+m}, v{68+m}")
    e(f"    v_add_f32 v{72+m}, v{72+m}, v{76+m}")
    e(f"    v_add_f32 v{64+m}, v{64+m}, v{72+m}")
    e(f"    v_mul_f32 v{64+m}, v{64+m}, v15")
    bf16r(f"v{64+m}", f"v{64+m}")
e("    v_cmp_gt_u32 vcc, 4, v2")
e("    s_and_saveexec_b64 s[46:47], vcc")
e(f"    ds_write_b128 v5, v[64:67] offset:{MULT}")
e("    s_mov_b64 exec, s[46:47]")
e("    s_waitcnt lgkmcnt(0)")
e("    s_barrier   ; B5")
stamp(11)
c("final reduce: WG r < 192 owns columns 3r..3r+2")
e("    s_cmp_ge_u32 s2, 192")
e("    s_cbranch_scc1 L_fin0")
e("    s_lshl_b32 s48, s2, 4")
e(f"    s_add_u32 s48, s48, {PC}")
e("    v_mul_u32_u24 v4, 3072, v2")
for j in range(4):
    e(f"    v_add_u32 v{20+j}, s48, v4")
    if j < 3: e("    v_add_u32 v4, 196608, v4")
e("    s_mul_i32 s48, s2, 6")
e("    v_min_u32 v7, 2, v2")
e("    v_lshlrev_b32 v7, 1, v7")
e("    v_add_u32 v7, s48, v7")
e("    buffer_load_ushort v12, v7, s[36:39], 0 offen")
e("L_fin0:")
e("    s_barrier   ; B6a")
e("    s_cmp_ge_u32 s2, 192")
e("    s_cbranch_scc1 L_end2")
gather([20+j for j in range(4)], [64+4*j for j in range(4)], "s[26:27]")
stamp(13)
for j in range(1,4):
    for m in range(3):
        e(f"    v_add_f32 v{64+m}, v{64+m}, v{64+4*j+m}")
for rot in (8,4,2,1):
    e("    s_nop 1")
    for m in range(3):
        e(f"    v_add_f32_dpp v{64+m}, v{64+m}, v{64+m} row_ror:{rot} row_mask:0xf bank_mask:0xf")
for m in range(3):
    crossrow(f"v{64+m}")
e("    v_cmp_eq_u32 vcc, 1, v2")
e("    s_nop 1")
e("    v_cndmask_b32 v64, v64, v65, vcc")
e("    v_cmp_eq_u32 vcc, 2, v2")
e("    s_nop 1")
e("    v_cndmask_b32 v64, v64, v66, vcc")
e("    v_lshlrev_b32 v12, 16, v12")
e("    v_add_f32 v64, v64, v12")
e("    v_cvt_pk_bf16_f32 v65, v64, v64")
e("    s_mov_b32 s56, s22")
e("    s_and_b32 s57, s23, 0xffff")
e("    s_movk_i32 s58, 1152")
e("    s_mov_b32 s59, 0x20000")
e("    v_cmp_gt_u32 vcc, 3, v2")
e("    s_and_saveexec_b64 s[46:47], vcc")
e("    buffer_store_short v65, v7, s[56:59], 0 offen")
e("    s_mov_b64 exec, s[46:47]")
e("L_end2:")
stamp(14)
e("L_end:")
e("    s_endpgm")
e('.section .rodata,"a"')
e(".p2align 6")
e(f".amdhsa_kernel {NAME}_kernel")
e("  .amdhsa_next_free_vgpr 168")
e("  .amdhsa_next_free_sgpr 96")
e("  .amdhsa_accum_offset 168")
e("  .amdhsa_group_segment_fixed_size 0")
e("  .amdhsa_kernarg_size 96")
e("  .amdhsa_user_sgpr_count 2")
e("  .amdhsa_user_sgpr_kernarg_segment_ptr 1")
e("  .amdhsa_system_sgpr_workgroup_id_x 1")
e(".end_amdhsa_kernel")
open("diag.s" if STAMPS else f"cdna_kernels/{NAME}.s","w").write("\n".join(L)+"\n")
print("lines", len(L))
```

```python
import sys, os
STAMPS = int(os.environ.get("STAMPS","0"))
NAME = "parallel_sum__sliding_block_cached__glu_gated_reglu__decode"
L = []
def e(s=""): L.append(s)
def c(s): L.append("    ; " + s)
for t in range(576):
    assert (t*911) >> 16 == t//72
    assert (t*21846) >> 16 == t//3
    assert (t*745) >> 14 == t//22
for cb in range(144): assert (cb*57) >> 9 == cb//9
for t in range(128): assert (t*171) >> 10 == t//6

XN=0; Q=2304; WMAX=2816; WL=2880; MULT=2944
CNT2=3248; CNT=3252; NONCE=3256
SL=3264; T16=4608; RA1=5888; RED=7424
LDS_END=RED+7*2304
PA1=0; PA2=1<<20; PB=2<<20; PC=3<<20
VA=48; VK=84; VV=116; VC=148; S=48; O=28

e(f"; @launch grid=(256,1,1) block=(576,1,1) lds={LDS_END}")
e('.amdgcn_target "amdgcn-amd-amdhsa--gfx950"')
e(".text")
e(f".globl {NAME}_kernel")
e(".p2align 8")
e(f".type {NAME}_kernel,@function")
e(f"{NAME}_kernel:")
e("    s_cmp_ge_u32 s2, 256")
e("    s_cbranch_scc1 L_end")
e("    s_load_dwordx16 s[4:19], s[0:1], 0")
e("    s_load_dwordx8 s[20:27], s[0:1], 64")
e("    v_lshrrev_b32 v1, 6, v0")
e("    v_and_b32 v2, 63, v0")
e("    v_readfirstlane_b32 s28, v1")
e("    s_lshr_b32 s29, s2, 4")
e("    s_and_b32 s30, s2, 15")
e("    s_waitcnt lgkmcnt(0)")
e("    s_mov_b32 s36, s4")
e("    s_and_b32 s37, s5, 0xffff")
e("    s_movk_i32 s38, 1152")
e("    s_mov_b32 s39, 0x20000")
e("    s_cmp_eq_u32 s28, 8")
e("    s_cbranch_scc1 L_comm")

def bf16r(dst, src):
    e(f"    v_cvt_pk_bf16_f32 {dst}, {src}, {src}")
    e(f"    v_lshlrev_b32 {dst}, 16, {dst}")
def rowsum(v, op="add", rots=(8,4,2,1)):
    for rot in rots:
        e("    s_nop 1")
        e(f"    v_{op}_f32_dpp {v}, {v}, {v} row_ror:{rot} row_mask:0xf bank_mask:0xf")
def crossrow(v, op="add"):
    e("    s_nop 1")
    for r in range(4):
        e(f"    v_readlane_b32 s{64+r}, {v}, {16*r}")
    e("    s_nop 1")
    e(f"    v_mov_b32 {v}, s64")
    for r in range(1,4):
        e(f"    v_{op}_f32 {v}, s{64+r}, {v}")
sst=[0]
def sstamp(i):
    if STAMPS != 1: return
    n=sst[0]; sst[0]+=1
    e("    s_cmp_lg_u32 s28, 0")
    e(f"    s_cbranch_scc1 L_ss{n}")
    e("    s_memrealtime s[84:85]")
    e("    s_waitcnt lgkmcnt(0)")
    e("    s_lshl_b32 s86, s2, 7")
    e(f"    s_add_u32 s86, s86, {(8<<20)+8*i}")
    e("    v_mov_b32 v37, s86")
    e("    v_mov_b32 v38, s84")
    e("    v_mov_b32 v39, s85")
    e("    s_mov_b64 s[88:89], exec")
    e("    s_mov_b64 exec, 1")
    e("    global_store_dwordx2 v37, v[38:39], s[26:27]")
    e("    s_mov_b64 exec, s[88:89]")
    e(f"L_ss{n}:")
def unpack(r):
    e(f"    v_lshlrev_b32 v44, 16, v{r}")
    e(f"    v_and_b32 v45, 0xffff0000, v{r}")

e("    v_lshlrev_b32 v40, 4, v2")
e("    v_add_u32 v41, 4096, v40")
e("    buffer_load_dwordx4 v[8:11], v40, s[36:39], 0 offen")
e("    buffer_load_dwordx4 v[12:15], v40, s[36:39], 0 offen offset:1024")
c("A1: wq  cb = w>>2, rows 144*(w&3) + (t>>3) + 48j")
e("    s_lshr_b32 s40, s2, 2")
e("    s_and_b32 s41, s2, 3")
e("    s_mul_i32 s42, s41, 144*8192")
e("    s_lshl_b32 s43, s40, 7")
e("    s_add_u32 s42, s42, s43")
e("    s_add_u32 s54, s10, s42")
e("    s_addc_u32 s55, s11, 0")
e("    v_lshrrev_b32 v3, 3, v0")
e("    v_and_b32 v4, 7, v0")
e("    v_lshlrev_b32 v5, 13, v3")
e("    v_lshl_add_u32 v5, v4, 4, v5")
e("    s_mul_i32 s41, s41, 144")
e("    v_add_u32 v42, s41, v3")
e("    v_lshlrev_b32 v42, 2, v42")
e("    s_cmp_ge_u32 s28, 6")
e("    s_cbranch_scc1 L_skipA1")
for j in range(3):
    e(f"    global_load_dwordx4 v[{VA+4*j}:{VA+4*j+3}], v5, s[54:55] nt")
    if j < 2: e("    v_add_u32 v5, 393216, v5")
e("L_skipA1:")
c("A2: [Wg|Wu] col-blocks 9g..9g+8, rows 36p + t/72 + 6j")
e("    v_mul_u32_u24 v3, 911, v0")
e("    v_lshrrev_b32 v3, 16, v3")
e("    v_mul_u32_u24 v4, 72, v3")
e("    v_sub_u32 v4, v0, v4")
e("    v_lshrrev_b32 v6, 3, v4")
e("    v_and_b32 v7, 7, v4")
e("    s_mul_i32 s40, s29, 9")
e("    v_add_u32 v6, s40, v6")
e("    v_cmp_gt_u32 vcc, 72, v6")
e("    v_subrev_u32 v16, 72, v6")
e("    v_mov_b32 v17, s18")
e("    v_mov_b32 v18, s16")
e("    v_cndmask_b32 v6, v16, v6, vcc")
e("    v_cndmask_b32 v17, v17, v18, vcc")
e("    v_mov_b32 v19, s19")
e("    v_mov_b32 v20, s17")
e("    v_cndmask_b32 v19, v19, v20, vcc")
e("    s_mul_i32 s44, s30, 36")
e("    v_add_u32 v22, s44, v3")
e("    v_mul_u32_u24 v23, 9216, v22")
e("    v_lshl_add_u32 v23, v6, 7, v23")
e("    v_lshl_add_u32 v23, v7, 4, v23")
e("    v_add_co_u32 v16, vcc, v17, v23")
e("    v_addc_co_u32 v17, vcc, 0, v19, vcc")
e("    v_lshlrev_b32 v46, 2, v22")
e("    v_mul_u32_u24 v47, 2304, v3")
e("    v_lshl_add_u32 v47, v4, 5, v47")
e("    v_lshlrev_b32 v1, 2, v3")
e("    s_mov_b32 s48, 55296")
e("    s_cmp_eq_u32 s28, 7")
e("    s_cbranch_scc1 L_skipA")
e("    s_movk_i32 s49, 432")
e("    v_cmp_gt_u32 vcc, s49, v0")
e("    s_and_saveexec_b64 s[46:47], vcc")
for j in range(6):
    e(f"    global_load_dwordx4 v[{VA+12+4*j}:{VA+12+4*j+3}], v[16:17], off nt")
    if j < 5:
        e("    v_add_co_u32 v16, vcc, s48, v16")
        e("    v_addc_co_u32 v17, vcc, 0, v17, vcc")
e("    s_mov_b64 exec, s[46:47]")
e("L_skipA:")
c("LN (per wave)")
e("    s_cmp_eq_u32 s28, 7")
e("    s_cbranch_scc1 L_w7x")
e("    s_cmp_eq_u32 s28, 6")
e("    s_cbranch_scc1 L_w6x")
e("    s_waitcnt vmcnt(9)")
e("    s_branch L_xok")
e("L_w6x:")
e("    s_waitcnt vmcnt(6)")
e("    s_branch L_xok")
e("L_w7x:")
e("    s_waitcnt vmcnt(0)")
e("L_xok:")
e("    v_cmp_gt_u32 vcc, 8, v2")
e("    s_nop 1")
e("    v_cndmask_b32 v45, 0, 1.0, vcc")
for k in range(8):
    e(f"    v_lshlrev_b32 v{16+2*k}, 16, v{8+k}")
    e(f"    v_and_b32 v{17+2*k}, 0xffff0000, v{8+k}")
e("    v_add_f32 v32, v16, v17")
for k in range(2,16):
    e(f"    v_add_f32 v32, v32, v{16+k}")
rowsum("v32"); crossrow("v32")
e("    v_mul_f32 v32, 0x3ae38e39, v32")
e("    v_sub_f32 v34, v16, v32")
e("    v_mul_f32 v33, v34, v34")
for k in range(1,16):
    e(f"    v_sub_f32 v34, v{16+k}, v32")
    if k >= 8: e(f"    v_mul_f32 v34, v34, v45")
    e(f"    v_fmac_f32 v33, v34, v34")
rowsum("v33"); crossrow("v33")
e("    v_mul_f32 v33, 0x3ae38e39, v33")
bf16r("v32","v32"); bf16r("v33","v33")
e("    v_add_f32 v33, 0x3727c5ac, v33")
bf16r("v33","v33")
e("    v_sqrt_f32 v33, v33")
e("    s_nop 0")
bf16r("v33","v33")
e("    v_rcp_f32 v33, v33")
e("    s_nop 0")
for k in range(16):
    e(f"    v_sub_f32 v{16+k}, v{16+k}, v32")
    bf16r(f"v{16+k}", f"v{16+k}")
    e(f"    v_mul_f32 v{16+k}, v{16+k}, v33")
    bf16r(f"v{16+k}", f"v{16+k}")
e("    v_lshlrev_b32 v4, 5, v2")
e(f"    ds_write_b128 v4, v[16:19] offset:{XN}")
e(f"    ds_write_b128 v4, v[20:23] offset:{XN+16}")
e("    v_cmp_gt_u32 vcc, 8, v2")
e("    s_and_saveexec_b64 s[46:47], vcc")
e(f"    ds_write_b128 v4, v[24:27] offset:{XN+2048}")
e(f"    ds_write_b128 v4, v[28:31] offset:{XN+2064}")
e("    s_mov_b64 exec, s[46:47]")
c("---- A1 compute (waves 0..5)")
e("    s_cmp_ge_u32 s28, 6")
e("    s_cbranch_scc1 L_skipA1c")
e("    s_waitcnt lgkmcnt(0)")
for j in range(3):
    e(f"    ds_read_b32 v{16+j}, v42 offset:{XN+192*j}")
for i in range(8):
    e(f"    v_mov_b32 v{28+i}, 0")
e("    s_waitcnt lgkmcnt(0)")
for j in range(3):
    e(f"    s_waitcnt vmcnt({8-j})")
    for d in range(4):
        unpack(VA+4*j+d)
        e(f"    v_fmac_f32 v{28+2*d}, v44, v{16+j}")
        e(f"    v_fmac_f32 v{29+2*d}, v45, v{16+j}")
e("    s_nop 1")
for i in range(8):
    e(f"    v_add_f32_dpp v{28+i}, v{28+i}, v{28+i} row_ror:8 row_mask:0xf bank_mask:0xf")
e("    s_nop 1")
for i in range(4):
    e(f"    v_permlane32_swap_b32 v{28+i}, v{32+i}")
for i in range(4):
    e(f"    v_add_f32 v{28+i}, v{28+i}, v{32+i}")
e("    s_nop 1")
for i in range(2):
    e(f"    v_permlane16_swap_b32 v{28+i}, v{30+i}")
for i in range(2):
    e(f"    v_add_f32 v{28+i}, v{28+i}, v{30+i}")
e("    v_and_b32 v3, 7, v2")
e("    v_lshlrev_b32 v3, 5, v3")
e("    v_bfe_u32 v4, v2, 4, 1")
e("    v_lshl_add_u32 v3, v4, 3, v3")
e("    v_lshrrev_b32 v4, 5, v2")
e("    v_lshl_add_u32 v3, v4, 4, v3")
e("    s_lshl_b32 s48, s28, 8")
e("    v_add_u32 v3, s48, v3")
e(f"    ds_write_b64 v3, v[28:29] offset:{RA1}")
e("L_skipA1c:")
e("    s_waitcnt lgkmcnt(0)")
e("    s_barrier   ; Ba")
c("publish A1 partial: wave 0, lanes < 22")
e("    s_cmp_lg_u32 s28, 0")
e("    s_cbranch_scc1 L_skipP1")
e("    v_mov_b32 v17, 0")
e(f"    ds_read_b32 v11, v17 offset:{NONCE}")
e("    v_cmp_gt_u32 vcc, 22, v0")
e("    s_and_saveexec_b64 s[46:47], vcc")
e("    v_mul_u32_u24 v6, 12, v0")
for r in range(6):
    for m in range(3):
        e(f"    ds_read_b32 v{16+4*r+m}, v6 offset:{RA1+256*r+4*m}")
e(f"    s_mul_i32 s48, s2, 352")
if PA1: e(f"    s_add_u32 s48, s48, {PA1}")
e(f"    s_add_u32 s50, s26, s48")
e(f"    s_addc_u32 s51, s27, 0")
e("    v_lshlrev_b32 v4, 4, v0")
e("    s_waitcnt lgkmcnt(0)")
for m in range(3):
    e(f"    v_add_f32 v{8+m}, v{16+m}, v{20+m}")
    for r in range(2,6):
        e(f"    v_add_f32 v{8+m}, v{8+m}, v{16+4*r+m}")
e("    global_store_dwordx4 v4, v[8:11], s[50:51] sc0 sc1")
e("    s_mov_b64 exec, s[46:47]")
e("L_skipP1:")
c("K, V")
e("    s_lshl_b32 s45, s29, 23")
e("    s_lshl_b32 s48, s30, 16")
e("    s_add_u32 s45, s45, s48")
e("    s_lshl_b32 s48, s28, 13")
e("    s_add_u32 s45, s45, s48")
e("    s_add_u32 s45, s45, 7340032")
e("    s_add_u32 s32, s6, s45")
e("    s_addc_u32 s33, s7, 0")
e("    s_add_u32 s34, s8, s45")
e("    s_addc_u32 s35, s9, 0")
for j in range(8):
    e(f"    global_load_dwordx4 v[{VK+4*j}:{VK+4*j+3}], v{40 if j<4 else 41}, s[32:33] offset:{(j%4)*1024} nt")
for j in range(8):
    e(f"    global_load_dwordx4 v[{VV+4*j}:{VV+4*j+3}], v{40 if j<4 else 41}, s[34:35] offset:{(j%4)*1024} nt")
c("C weights: rows (t/72)+7j of [wo rows 16w.. | Wd rows 18w..]")
e("    v_mul_u32_u24 v3, 911, v0")
e("    v_lshrrev_b32 v3, 16, v3")
e("    v_mul_u32_u24 v4, 72, v3")
e("    v_sub_u32 v4, v0, v4")
e("    s_mul_i32 s48, s2, 16*1152")
e("    s_add_u32 s50, s12, s48")
e("    s_addc_u32 s51, s13, 0")
e("    s_mul_i32 s48, s2, 18*1152")
e("    s_add_u32 s52, s20, s48")
e("    s_addc_u32 s53, s21, 0")
e("    s_sub_u32 s52, s52, 16*1152")
e("    s_subb_u32 s53, s53, 0")
e("    v_mov_b32 v24, s50")
e("    v_mov_b32 v25, s51")
e("    v_mov_b32 v26, s52")
e("    v_mov_b32 v27, s53")
for j in range(5):
    e(f"    v_add_u32 v5, {7*j}, v3")
    e("    v_min_u32 v5, 33, v5")
    e("    v_cmp_gt_u32 vcc, 16, v5")
    e("    v_mul_u32_u24 v6, 1152, v5")
    e("    v_lshl_add_u32 v6, v4, 4, v6")
    e("    v_cndmask_b32 v28, v26, v24, vcc")
    e("    v_cndmask_b32 v29, v27, v25, vcc")
    e("    v_add_co_u32 v16, vcc, v28, v6")
    e("    v_addc_co_u32 v17, vcc, 0, v29, vcc")
    e(f"    global_load_dwordx4 v[{VC+4*j}:{VC+4*j+3}], v[16:17], off nt")
c("---- A2 compute (waves 0..6)")
e("    s_cmp_eq_u32 s28, 7")
e("    s_cbranch_scc1 L_skipA2")
e("    s_movk_i32 s49, 432")
e("    v_cmp_gt_u32 vcc, s49, v0")
e("    s_and_saveexec_b64 s[46:47], vcc")
for j in range(6):
    e(f"    ds_read_b32 v{16+j}, v46 offset:{XN+24*j}")
for i in range(8):
    e(f"    v_mov_b32 v{28+i}, 0")
e("    s_waitcnt lgkmcnt(0)")
for j in range(6):
    e(f"    s_waitcnt vmcnt({26-j})")
    for d in range(4):
        unpack(VA+12+4*j+d)
        e(f"    v_fmac_f32 v{28+2*d}, v44, v{16+j}")
        e(f"    v_fmac_f32 v{29+2*d}, v45, v{16+j}")
e(f"    ds_write_b128 v47, v[28:31] offset:{RED}")
e(f"    ds_write_b128 v47, v[32:35] offset:{RED+16}")
e("    s_mov_b64 exec, s[46:47]")
e("    s_waitcnt lgkmcnt(0)")
e("    v_mov_b32 v17, 0")
e("    v_mov_b32 v16, 1")
e("    s_mov_b64 exec, 1")
e(f"    ds_add_u32 v17, v16 offset:{CNT}")
e("    s_mov_b64 exec, -1")
e("L_skipA2:")
c("publish A2 partial: threads < 198 (waves 0..3) once all 7 waves have written")
e("    s_cmp_ge_u32 s28, 4")
e("    s_cbranch_scc1 L_skipPA0")
e("    v_mov_b32 v17, 0")
e("L_spin:")
e(f"    ds_read_b32 v16, v17 offset:{CNT}")
e("    s_waitcnt lgkmcnt(0)")
e("    v_readfirstlane_b32 s48, v16")
e("    s_cmp_lt_u32 s48, 7")
e("    s_cbranch_scc1 L_spin")
e(f"    ds_read_b32 v11, v17 offset:{NONCE}")
e("    s_movk_i32 s48, 198")
e("    v_cmp_gt_u32 vcc, s48, v0")
e("    s_and_saveexec_b64 s[46:47], vcc")
e("    v_mul_u32_u24 v5, 745, v0")
e("    v_lshrrev_b32 v5, 14, v5")
e("    v_mul_u32_u24 v6, 22, v5")
e("    v_sub_u32 v6, v0, v6")
e("    v_mul_u32_u24 v6, 12, v6")
e("    v_lshl_add_u32 v6, v5, 8, v6")
for r in range(6):
    for m in range(3):
        e(f"    ds_read_b32 v{16+4*r+m}, v6 offset:{RED+2304*r+4*m}")
e(f"    s_mul_i32 s48, s2, 3168")
e(f"    s_add_u32 s48, s48, {PA2}")
e(f"    s_add_u32 s50, s26, s48")
e(f"    s_addc_u32 s51, s27, 0")
e("    v_lshlrev_b32 v4, 4, v0")
e("    s_waitcnt lgkmcnt(0)")
for m in range(3):
    e(f"    v_add_f32 v{8+m}, v{16+m}, v{20+m}")
    for r in range(2,6):
        e(f"    v_add_f32 v{8+m}, v{8+m}, v{16+4*r+m}")
e("    global_store_dwordx4 v4, v[8:11], s[50:51] sc0 sc1")
e("    s_mov_b64 exec, s[46:47]")
e("L_skipPA0:")
sstamp(3)
e("    s_barrier   ; B3 (q ready)")
sstamp(4)
c("---- scores")
e("    v_and_b32 v3, 15, v2")
e("    v_lshlrev_b32 v3, 4, v3")
e(f"    ds_read_b128 v[8:11], v3 offset:{Q}")
e(f"    ds_read_b128 v[12:15], v3 offset:{Q+256}")
e("    s_waitcnt lgkmcnt(0)")
e("    s_waitcnt vmcnt(13)")
sstamp(6)
for j in range(8):
    for d in range(4):
        for h in range(2):
            q = 8+4*h
            src = "0" if d == 0 else f"v{S+2*j+h}"
            e(f"    v_dot2_f32_bf16 v{S+2*j+h}, v{VK+4*j+d}, v{q+d}, {src}")
for rot in (8,4,2,1):
    for k in range(16):
        e(f"    v_add_f32_dpp v{S+k}, v{S+k}, v{S+k} row_ror:{rot} row_mask:0xf bank_mask:0xf")
c("bf16 roundings as in the reference (scores, scaled scores), then log2e")
e("    v_mov_b32 v16, 0x3db504f3")
e("    v_mov_b32 v17, 0x3fb8aa3b")
for k in range(0,16,2):
    e(f"    v_cvt_pk_bf16_f32 v64, v{S+k}, v{S+k+1}")
    e(f"    v_lshlrev_b32 v{S+k}, 16, v64")
    e(f"    v_and_b32 v{S+k+1}, 0xffff0000, v64")
    e(f"    v_pk_mul_f32 v[{S+k}:{S+k+1}], v[{S+k}:{S+k+1}], v[16:17] op_sel_hi:[1,0]")
    e(f"    v_cvt_pk_bf16_f32 v64, v{S+k}, v{S+k+1}")
    e(f"    v_lshlrev_b32 v{S+k}, 16, v64")
    e(f"    v_and_b32 v{S+k+1}, 0xffff0000, v64")
    e(f"    v_pk_mul_f32 v[{S+k}:{S+k+1}], v[{S+k}:{S+k+1}], v[16:17] op_sel:[0,1] op_sel_hi:[1,1]")
for h in range(2):
    e(f"    v_max3_f32 v{64+h}, v{S+h}, v{S+2+h}, v{S+4+h}")
    e(f"    v_max3_f32 v{66+h}, v{S+6+h}, v{S+8+h}, v{S+10+h}")
    e(f"    v_max3_f32 v{64+h}, v{64+h}, v{S+12+h}, v{S+14+h}")
    e(f"    v_max_f32 v{64+h}, v{64+h}, v{66+h}")
c("cross-row max of both heads: swap trick -> lanes<32: head0 over (r, r+2) ...")
e("    s_nop 1")
e("    v_permlane32_swap_b32 v64, v65")
e("    v_max_f32 v64, v64, v65")
e("    v_mov_b32 v65, v64")
e("    s_nop 1")
e("    v_permlane16_swap_b32 v64, v65")
e("    v_max_f32 v64, v64, v65")
e("    s_lshl_b32 s48, s28, 3")
e("    v_lshrrev_b32 v17, 5, v2")
e("    v_lshl_add_u32 v17, v17, 2, s48")
e("    s_mov_b64 s[46:47], exec")
e("    s_mov_b32 exec_lo, 1")
e("    s_mov_b32 exec_hi, 1")
e(f"    ds_write_b32 v17, v64 offset:{WMAX}")
e("    s_waitcnt lgkmcnt(0)")
e("    s_mov_b32 exec_hi, 0")
e("    v_mov_b32 v17, 0")
e("    v_mov_b32 v16, 1")
e(f"    ds_add_u32 v17, v16 offset:{CNT2}")
e("    s_mov_b64 exec, s[46:47]")
e("    v_mov_b32 v17, 0")
e("L_spin2:")
e(f"    ds_read_b32 v16, v17 offset:{CNT2}")
e("    s_waitcnt lgkmcnt(0)")
e("    v_readfirstlane_b32 s48, v16")
e("    s_cmp_lt_u32 s48, 8")
e("    s_cbranch_scc1 L_spin2")
for k in range(4):
    e(f"    ds_read_b128 v[{68+4*k}:{68+4*k+3}], v17 offset:{WMAX+16*k}")
e("    s_waitcnt lgkmcnt(0)")
for h in range(2):
    e(f"    v_max3_f32 v{66+h}, v{68+h}, v{70+h}, v{72+h}")
    e(f"    v_max3_f32 v{64+h}, v{74+h}, v{76+h}, v{78+h}")
    e(f"    v_max3_f32 v{66+h}, v{66+h}, v{80+h}, v{82+h}")
    e(f"    v_max_f32 v{66+h}, v{66+h}, v{64+h}")
for k in range(16):
    e(f"    v_sub_f32 v{S+k}, v{S+k}, v{66+(k%2)}")
for k in range(16):
    e(f"    v_exp_f32 v{S+k}, v{S+k}")
e("    s_nop 0")
for h in range(2):
    e(f"    v_add_f32 v{64+h}, v{S+h}, v{S+2+h}")
    for j in range(2,8):
        e(f"    v_add_f32 v{64+h}, v{64+h}, v{S+2*j+h}")
e("    s_nop 1")
e("    v_permlane32_swap_b32 v64, v65")
e("    v_add_f32 v64, v64, v65")
e("    v_mov_b32 v65, v64")
e("    s_nop 1")
e("    v_permlane16_swap_b32 v64, v65")
e("    v_add_f32 v64, v64, v65")
e("    s_lshl_b32 s48, s28, 3")
e("    v_lshrrev_b32 v17, 5, v2")
e("    v_lshl_add_u32 v17, v17, 2, s48")
e("    s_mov_b64 s[46:47], exec")
e("    s_mov_b32 exec_lo, 1")
e("    s_mov_b32 exec_hi, 1")
e(f"    ds_write_b32 v17, v64 offset:{WL}")
e("    s_mov_b64 exec, s[46:47]")
c("---- PV")
for j in range(8):
    e(f"    s_waitcnt vmcnt({12-j})")
    for d in range(4):
        unpack(VV+4*j+d)
        for h in range(2):
            a = O+8*h+2*d
            sel = "op_sel:[0,0,0] op_sel_hi:[1,0,1]" if h == 0 else "op_sel:[0,1,0] op_sel_hi:[1,1,1]"
            if j == 0:
                e(f"    v_pk_mul_f32 v[{a}:{a+1}], v[44:45], v[{S}:{S+1}] " + ("op_sel:[0,0] op_sel_hi:[1,0]" if h == 0 else "op_sel:[0,1] op_sel_hi:[1,1]"))
            else:
                e(f"    v_pk_fma_f32 v[{a}:{a+1}], v[44:45], v[{S+2*j}:{S+2*j+1}], v[{a}:{a+1}] {sel}")
e("    s_nop 1")
for i in range(8):
    e(f"    v_permlane32_swap_b32 v{O+i}, v{O+8+i}")
for i in range(8):
    e(f"    v_add_f32 v{O+i}, v{O+i}, v{O+8+i}")
e("    s_nop 1")
for i in range(4):
    e(f"    v_permlane16_swap_b32 v{O+i}, v{O+4+i}")
for i in range(4):
    e(f"    v_add_f32 v{O+i}, v{O+i}, v{O+4+i}")
e("    v_and_b32 v3, 15, v2")
e("    v_lshlrev_b32 v3, 5, v3")
e("    v_bfe_u32 v4, v2, 4, 1")
e("    v_lshl_add_u32 v3, v4, 4, v3")
e("    v_lshrrev_b32 v4, 5, v2")
e("    v_lshl_add_u32 v3, v4, 9, v3")
e("    s_lshl_b32 s48, s28, 10")
e("    v_add_u32 v3, s48, v3")
e(f"    ds_write_b128 v3, v[{O}:{O+3}] offset:{RED}")
e("    s_waitcnt lgkmcnt(0)")
sstamp(7)
e("    s_barrier   ; B4")
e("    s_barrier   ; B5 (o/h ready)")
c("---- phase C")
for j in range(5):
    e(f"    ds_read_b32 v{8+j}, v1 offset:{MULT+28*j}")
e("    s_waitcnt lgkmcnt(0)")
for j in range(5):
    e(f"    s_waitcnt vmcnt({4-j})")
    for d in range(4):
        unpack(VC+4*j+d)
        a = O+2*d
        if j == 0:
            e(f"    v_mul_f32 v{a}, v44, v{8+j}")
            e(f"    v_mul_f32 v{a+1}, v45, v{8+j}")
        else:
            e(f"    v_fmac_f32 v{a}, v44, v{8+j}")
            e(f"    v_fmac_f32 v{a+1}, v45, v{8+j}")
e("    s_movk_i32 s49, 504")
e("    v_cmp_gt_u32 vcc, s49, v0")
e("    s_and_saveexec_b64 s[46:47], vcc")
e("    s_cbranch_execz L_skipC")
e(f"    ds_write_b128 v47, v[{O}:{O+3}] offset:{RED}")
e(f"    ds_write_b128 v47, v[{O+4}:{O+7}] offset:{RED+16}")
e("L_skipC:")
e("    s_mov_b64 exec, s[46:47]")
e("    s_waitcnt lgkmcnt(0)")
e("    s_barrier   ; B6a")
c("second-level reduce + tagged publish by threads < 192 (waves 0..2)")
e("    s_cmp_ge_u32 s28, 3")
e("    s_cbranch_scc1 L_skipC2")
e("    v_mov_b32 v17, 0")
e(f"    ds_read_b32 v67, v17 offset:{NONCE}")
e("    v_mul_u32_u24 v8, 12, v0")
for r in range(7):
    for m in range(3):
        e(f"    ds_read_b32 v{72+4*r+m}, v8 offset:{RED+2304*r+4*m}")
e(f"    s_mul_i32 s48, s2, 3072")
e(f"    s_add_u32 s48, s48, {PC}")
e(f"    s_add_u32 s50, s26, s48")
e(f"    s_addc_u32 s51, s27, 0")
e("    v_lshlrev_b32 v4, 4, v0")
e("    s_waitcnt lgkmcnt(0)")
for m in range(3):
    e(f"    v_add_f32 v{64+m}, v{72+m}, v{76+m}")
    for r in range(2,7):
        e(f"    v_add_f32 v{64+m}, v{64+m}, v{72+4*r+m}")
e("    global_store_dwordx4 v4, v[64:67], s[50:51] sc0 sc1")
e("L_skipC2:")
sstamp(12)
e("    s_endpgm")

dsn=[0]
def stamp(i):
    if STAMPS == 2:
        n = dsn[0]; dsn[0] += 1
        e("    s_cmp_lg_u32 s2, 100")
        e(f"    s_cbranch_scc1 L_ds{n}")
        e("    s_memrealtime s[76:77]")
        e("    s_waitcnt lgkmcnt(0)")
        e("    v_mov_b32 v52, s76")
        e("    v_mov_b32 v54, 0")
        e("    s_mov_b64 s[80:81], exec")
        e("    s_mov_b64 exec, 1")
        e(f"    global_store_dword v54, v52, s[24:25] offset:{4+4*i}")
        e("    s_mov_b64 exec, s[80:81]")
        e(f"L_ds{n}:")
        return
    if not STAMPS: return
    e("    s_memrealtime s[76:77]")
    e("    s_waitcnt lgkmcnt(0)")
    e("    v_mov_b32 v52, s76")
    e("    v_mov_b32 v53, s77")
    e("    s_lshl_b32 s78, s2, 7")
    e(f"    s_add_u32 s78, s78, {(8<<20)+8*i}")
    e("    v_mov_b32 v54, s78")
    e("    s_mov_b64 s[80:81], exec")
    e("    s_mov_b64 exec, 1")
    e("    global_store_dwordx2 v54, v[52:53], s[26:27]")
    e("    s_mov_b64 exec, s[80:81]")
pc=[0]
def gather(addrs, regs, base):
    n = pc[0]; pc[0]+=1
    e("    s_mov_b32 s70, 0")
    e(f"L_g{n}:")
    for a,r in zip(addrs,regs):
        e(f"    global_load_dwordx4 v[{r}:{r+3}], v{a}, {base} sc0 sc1")
    e("    s_waitcnt vmcnt(0)")
    e(f"    v_xor_b32 v62, v63, v{regs[0]+3}")
    for r in regs[1:]:
        e(f"    v_xor_b32 v61, v63, v{r+3}")
        e("    v_or_b32 v62, v62, v61")
    e("    v_cmp_ne_u32 vcc, 0, v62")
    e(f"    s_cbranch_vccz L_gd{n}")
    e("    s_sleep 1")
    e("    s_add_u32 s70, s70, 1")
    e("    s_cmp_lt_u32 s70, 0x100000")
    e(f"    s_cbranch_scc1 L_g{n}")
    e(f"L_gd{n}:")

e("L_comm:")
stamp(0)
c("nonce: WG 0 installs its clock value in d_debug[0]; the others poll it")
e("    s_memrealtime s[74:75]")
e("    v_mov_b32 v4, 0")
e("    v_mov_b32 v5, 0")
e("    v_mov_b32 v6, 0")
e("    v_mov_b32 v7, 0")
e("    v_lshlrev_b32 v3, 4, v2")
e("    v_cmp_gt_u32 vcc, 20, v2")
e("    s_and_saveexec_b64 s[46:47], vcc")
e(f"    ds_write_b128 v3, v[4:7] offset:{MULT}")
e("    s_mov_b64 exec, s[46:47]")
e("    s_waitcnt lgkmcnt(0)")
e("    s_or_b32 s74, s74, 1")
e("    v_mov_b32 v8, s74")
e("    s_mov_b64 s[46:47], exec")
e("    s_mov_b64 exec, 1")
e("    s_cmp_lg_u32 s2, 0")
e("    s_cbranch_scc1 L_npoll")
e("    global_store_dword v4, v8, s[24:25] sc0 sc1")
e("    v_mov_b32 v10, v8")
e("    s_branch L_ndone")
e("L_npoll:")
e("    s_mov_b32 s70, 0")
e("L_np:")
e("    global_load_dword v10, v4, s[24:25] sc0 sc1")
e("    s_waitcnt vmcnt(0)")
e("    v_readfirstlane_b32 s71, v10")
e("    s_cmp_lg_u32 s71, 0")
e("    s_cbranch_scc1 L_ndone")
e("    s_add_u32 s70, s70, 1")
e("    s_cmp_lt_u32 s70, 0x100000")
e("    s_cbranch_scc1 L_np")
e("L_ndone:")
e("    s_nop 0")
e("    v_readfirstlane_b32 s74, v10")
e("    s_mov_b64 exec, s[46:47]")
e("    v_mov_b32 v63, s74")
e("    v_mov_b32 v5, 0")
e(f"    ds_write_b32 v5, v63 offset:{NONCE}")
e("    s_waitcnt lgkmcnt(0)")
stamp(1)
c("q gather addresses: 4 col-blocks x 22 granules x 4 partials")
for k in range(2):
    e(f"    v_add_u32 v4, {64*k}, v2")
    e("    v_min_u32 v4, 87, v4")
    e("    v_mul_u32_u24 v5, 745, v4")
    e("    v_lshrrev_b32 v5, 14, v5")
    e("    v_mul_u32_u24 v6, 22, v5")
    e("    v_sub_u32 v6, v4, v6")
    e("    s_lshl_b32 s48, s29, 2")
    e("    v_add_u32 v7, s48, v5")
    e("    v_mul_u32_u24 v10, 1408, v7")
    e("    v_lshl_add_u32 v10, v6, 4, v10")
    e(f"    v_mov_b32 v{28+2*k}, v5")
    e(f"    v_mov_b32 v{29+2*k}, v6")
    for pp in range(4):
        e(f"    v_add_u32 v{20+4*k+pp}, {PA1+352*pp}, v10")
e("    s_barrier   ; Ba")
stamp(2)
gather([20+i for i in range(8)], [64+4*i for i in range(8)], "s[26:27]")
for k in range(2):
    for pp in range(1,4):
        for m in range(3):
            e(f"    v_add_f32 v{64+16*k+m}, v{64+16*k+m}, v{64+16*k+4*pp+m}")
    e(f"    v_cvt_pk_bf16_f32 v64, v{64+16*k}, v{64+16*k}")
    e(f"    v_cvt_pk_bf16_f32 v65, v{65+16*k}, v{65+16*k}")
    e(f"    v_cvt_pk_bf16_f32 v66, v{66+16*k}, v{66+16*k}")
    e(f"    v_mul_u32_u24 v6, 3, v{29+2*k}")
    e(f"    v_lshl_add_u32 v7, v{28+2*k}, 6, v6")
    e("    v_lshlrev_b32 v7, 1, v7")
    e(f"    ds_write_b16 v7, v64 offset:{Q}")
    e("    v_cmp_gt_u32 vcc, 63, v6")
    e("    s_and_saveexec_b64 s[46:47], vcc")
    e(f"    ds_write_b16 v7, v65 offset:{Q+2}")
    e(f"    ds_write_b16 v7, v66 offset:{Q+4}")
    e("    s_mov_b64 exec, s[46:47]")
e("    s_waitcnt lgkmcnt(0)")
stamp(5)
e("    s_barrier   ; B3")
c("addresses for the o gather (v20,v21 ; LDS v22,v23) and the h gather (v24..39, slot v44)")
e("    s_lshr_b32 s48, s2, 3")
e("    s_and_b32 s48, s48, 1")
e("    s_mul_i32 s48, s48, 768")
e("    s_and_b32 s49, s2, 7")
e("    s_mul_i32 s49, s49, 96")
e("    s_add_u32 s48, s48, s49")
e("    s_mul_i32 s49, s29, 16*1536")
e("    s_add_u32 s48, s48, s49")
e(f"    s_add_u32 s48, s48, {PB}")
for k in range(2):
    e(f"    v_add_u32 v4, {64*k}, v2")
    e("    v_min_u32 v4, 95, v4")
    e("    v_mul_u32_u24 v5, 171, v4")
    e("    v_lshrrev_b32 v5, 10, v5")
    e("    v_mul_u32_u24 v6, 6, v5")
    e("    v_sub_u32 v6, v4, v6")
    e(f"    v_mul_u32_u24 v{20+k}, 1536, v5")
    e(f"    v_lshl_add_u32 v{20+k}, v6, 4, v{20+k}")
    e(f"    v_add_u32 v{20+k}, s48, v{20+k}")
    e("    v_mul_u32_u24 v6, 12, v6")
    e("    v_mul_u32_u24 v7, 80, v5")
    e(f"    v_add_u32 v{22+k}, v6, v7")
e("    s_mul_i32 s48, s2, 18")
e("    v_and_b32 v4, 31, v2")
e("    v_min_u32 v4, 17, v4")
e("    v_add_u32 v4, s48, v4")
e("    v_lshrrev_b32 v5, 6, v4")
e("    v_and_b32 v6, 63, v4")
e("    v_lshrrev_b32 v7, 5, v2")
e("    v_mul_u32_u24 v7, 72, v7")
e("    v_add_u32 v7, v7, v5")
e("    v_mul_u32_u24 v8, 57, v7")
e("    v_lshrrev_b32 v8, 9, v8")
e("    v_mul_u32_u24 v9, 9, v8")
e("    v_sub_u32 v9, v7, v9")
e("    v_mul_u32_u24 v10, 50688, v8")
e("    v_mul_u32_u24 v9, 352, v9")
e("    v_add_u32 v10, v10, v9")
e("    v_mul_u32_u24 v11, 21846, v6")
e("    v_lshrrev_b32 v11, 16, v11")
e("    v_lshl_add_u32 v10, v11, 4, v10")
e("    v_mul_u32_u24 v11, 3, v11")
e("    v_sub_u32 v44, v6, v11")
for pp in range(16):
    e(f"    v_add_u32 v{24+pp}, {PA2+3168*pp}, v10")
c("h gather (off the critical path while the streamers do attention)")
gather([24+pp for pp in range(16)],[80+4*pp for pp in range(16)],"s[26:27]")
for pp in range(1,16):
    for m in range(3):
        e(f"    v_add_f32 v{80+m}, v{80+m}, v{80+4*pp+m}")
e("    v_cmp_eq_u32 vcc, 1, v44")
e("    s_nop 1")
e("    v_cndmask_b32 v80, v80, v81, vcc")
e("    v_cmp_eq_u32 vcc, 2, v44")
e("    s_nop 1")
e("    v_cndmask_b32 v80, v80, v82, vcc")
bf16r("v80","v80")
e("    s_nop 1")
e("    v_permlane32_swap_b32 v80, v81")
e("    v_max_f32 v80, 0, v80")
e("    v_mul_f32 v80, v80, v81")
bf16r("v80","v80")
e("    v_lshlrev_b32 v4, 2, v2")
e("    v_cmp_gt_u32 vcc, 18, v2")
e("    s_and_saveexec_b64 s[46:47], vcc")
e(f"    ds_write_b32 v4, v80 offset:{MULT+64}")
e("    s_mov_b64 exec, s[46:47]")
stamp(9)
e("    s_barrier   ; B4")
stamp(8)
c("reduce 8 wave partials -> SL[hh][s][20] -> tagged publish B (96 granules)")
e("    v_lshlrev_b32 v4, 4, v2")
for k in range(8):
    e(f"    ds_read_b128 v[{64+4*k}:{64+4*k+3}], v4 offset:{RED+1024*k}")
e("    v_mov_b32 v5, 0")
for k in range(4):
    e(f"    ds_read_b128 v[{96+4*k}:{96+4*k+3}], v5 offset:{WMAX+16*k}")
    e(f"    ds_read_b128 v[{112+4*k}:{112+4*k+3}], v5 offset:{WL+16*k}")
e("    s_waitcnt lgkmcnt(0)")
for k in range(1,8):
    for m in range(4):
        e(f"    v_add_f32 v{64+m}, v{64+m}, v{64+4*k+m}")
for h in range(2):
    e(f"    v_max_f32 v{16+2*h}, v{96+h}, v{98+h}")
    e(f"    v_add_f32 v{17+2*h}, v{112+h}, v{114+h}")
    for k in range(2,8):
        e(f"    v_max_f32 v{16+2*h}, v{16+2*h}, v{96+2*k+h}")
        e(f"    v_add_f32 v{17+2*h}, v{17+2*h}, v{112+2*k+h}")
e("    v_cmp_le_u32 vcc, 32, v2")
e("    s_nop 1")
e("    v_cndmask_b32 v16, v16, v18, vcc")
e("    v_cndmask_b32 v17, v17, v19, vcc")
e("    v_lshrrev_b32 v6, 5, v2")
e("    v_mul_u32_u24 v6, 640, v6")
e("    v_bfe_u32 v7, v2, 2, 3")
e("    v_mul_u32_u24 v7, 80, v7")
e("    v_add_u32 v6, v6, v7")
e("    v_and_b32 v7, 3, v2")
e("    v_lshl_add_u32 v8, v7, 4, v6")
e(f"    ds_write_b128 v8, v[64:67] offset:{SL}")
e(f"    ds_write_b64 v6, v[16:17] offset:{SL+64}")
e("    s_waitcnt lgkmcnt(0)")
e(f"    s_mul_i32 s48, s2, 1536")
e(f"    s_add_u32 s48, s48, {PB}")
e(f"    s_add_u32 s50, s26, s48")
e(f"    s_addc_u32 s51, s27, 0")
for k in range(2):
    e(f"    v_add_u32 v4, {64*k}, v2")
    e("    v_min_u32 v4, 95, v4")
    e("    v_mul_u32_u24 v5, 171, v4")
    e("    v_lshrrev_b32 v5, 10, v5")
    e("    v_mul_u32_u24 v6, 6, v5")
    e("    v_sub_u32 v6, v4, v6")
    e("    v_mul_u32_u24 v6, 12, v6")
    e("    v_mul_u32_u24 v7, 80, v5")
    e("    v_add_u32 v6, v6, v7")
    for m in range(3):
        e(f"    ds_read_b32 v{8+4*k+m}, v6 offset:{SL+4*m}")
    e(f"    v_mov_b32 v{11+4*k}, v63")
    e(f"    v_lshlrev_b32 v{16+k}, 4, v4")
e("    s_waitcnt lgkmcnt(0)")
for k in range(2):
    e(f"    global_store_dwordx4 v{16+k}, v[{8+4*k}:{11+4*k}], s[50:51] sc0 sc1")
gather([20,21],[64,68],"s[26:27]")
stamp(10)
for k in range(2):
    for m in range(3):
        e(f"    ds_write_b32 v{22+k}, v{64+4*k+m} offset:{T16+4*m}")
e("    s_waitcnt lgkmcnt(0)")
e("    v_lshrrev_b32 v4, 2, v2")
e("    v_mul_u32_u24 v4, 80, v4")
e(f"    ds_read_b64 v[12:13], v4 offset:{T16+64}")
e("    v_and_b32 v5, 3, v2")
e("    v_lshl_add_u32 v4, v5, 4, v4")
e(f"    ds_read_b128 v[8:11], v4 offset:{T16}")
e("    s_waitcnt lgkmcnt(0)")
e("    v_mov_b32 v14, v12")
rowsum("v14","max",(8,4))
crossrow("v14","max")
e("    v_sub_f32 v14, v12, v14")
e("    v_exp_f32 v14, v14")
e("    s_nop 0")
e("    v_mul_f32 v15, v14, v13")
rowsum("v15","add",(8,4))
crossrow("v15","add")
for m in range(4):
    e(f"    v_mul_f32 v{8+m}, v{8+m}, v14")
for m in range(4):
    rowsum(f"v{8+m}","add",(8,4))
e("    v_lshrrev_b32 v6, 4, v2")
e("    v_lshlrev_b32 v6, 6, v6")
e("    v_lshl_add_u32 v6, v5, 4, v6")
e("    v_and_b32 v7, 12, v2")
e("    v_cmp_eq_u32 vcc, 0, v7")
e("    s_and_saveexec_b64 s[46:47], vcc")
e(f"    ds_write_b128 v6, v[8:11] offset:{SL}")
e("    s_mov_b64 exec, s[46:47]")
e("    s_waitcnt lgkmcnt(0)")
e("    v_lshlrev_b32 v5, 4, v5")
for r in range(4):
    e(f"    ds_read_b128 v[{64+4*r}:{64+4*r+3}], v5 offset:{SL+64*r}")
e("    v_rcp_f32 v15, v15")
e("    s_waitcnt lgkmcnt(0)")
for m in range(4):
    e(f"    v_add_f32 v{64+m}, v{64+m}, v{68+m}")
    e(f"    v_add_f32 v{72+m}, v{72+m}, v{76+m}")
    e(f"    v_add_f32 v{64+m}, v{64+m}, v{72+m}")
    e(f"    v_mul_f32 v{64+m}, v{64+m}, v15")
    bf16r(f"v{64+m}", f"v{64+m}")
e("    v_cmp_gt_u32 vcc, 4, v2")
e("    s_and_saveexec_b64 s[46:47], vcc")
e(f"    ds_write_b128 v5, v[64:67] offset:{MULT}")
e("    s_mov_b64 exec, s[46:47]")
e("    s_waitcnt lgkmcnt(0)")
e("    s_barrier   ; B5")
stamp(11)
c("final reduce: WG r < 192 owns columns 3r..3r+2")
e("    s_cmp_ge_u32 s2, 192")
e("    s_cbranch_scc1 L_fin0")
e("    s_lshl_b32 s48, s2, 4")
e(f"    s_add_u32 s48, s48, {PC}")
e("    v_mul_u32_u24 v4, 3072, v2")
for j in range(4):
    e(f"    v_add_u32 v{20+j}, s48, v4")
    if j < 3: e("    v_add_u32 v4, 196608, v4")
e("    s_mul_i32 s48, s2, 6")
e("    v_min_u32 v7, 2, v2")
e("    v_lshlrev_b32 v7, 1, v7")
e("    v_add_u32 v7, s48, v7")
e("    buffer_load_ushort v12, v7, s[36:39], 0 offen")
e("L_fin0:")
e("    s_barrier   ; B6a")
e("    s_cmp_ge_u32 s2, 192")
e("    s_cbranch_scc1 L_end2")
gather([20+j for j in range(4)], [64+4*j for j in range(4)], "s[26:27]")
stamp(13)
for j in range(1,4):
    for m in range(3):
        e(f"    v_add_f32 v{64+m}, v{64+m}, v{64+4*j+m}")
for rot in (8,4,2,1):
    e("    s_nop 1")
    for m in range(3):
        e(f"    v_add_f32_dpp v{64+m}, v{64+m}, v{64+m} row_ror:{rot} row_mask:0xf bank_mask:0xf")
for m in range(3):
    crossrow(f"v{64+m}")
e("    v_cmp_eq_u32 vcc, 1, v2")
e("    s_nop 1")
e("    v_cndmask_b32 v64, v64, v65, vcc")
e("    v_cmp_eq_u32 vcc, 2, v2")
e("    s_nop 1")
e("    v_cndmask_b32 v64, v64, v66, vcc")
e("    v_lshlrev_b32 v12, 16, v12")
e("    v_add_f32 v64, v64, v12")
e("    v_cvt_pk_bf16_f32 v65, v64, v64")
e("    s_mov_b32 s56, s22")
e("    s_and_b32 s57, s23, 0xffff")
e("    s_movk_i32 s58, 1152")
e("    s_mov_b32 s59, 0x20000")
e("    v_cmp_gt_u32 vcc, 3, v2")
e("    s_and_saveexec_b64 s[46:47], vcc")
e("    buffer_store_short v65, v7, s[56:59], 0 offen")
e("    s_mov_b64 exec, s[46:47]")
e("L_end2:")
stamp(14)
e("L_end:")
e("    s_endpgm")
e('.section .rodata,"a"')
e(".p2align 6")
e(f".amdhsa_kernel {NAME}_kernel")
e("  .amdhsa_next_free_vgpr 168")
e("  .amdhsa_next_free_sgpr 96")
e("  .amdhsa_accum_offset 168")
e("  .amdhsa_group_segment_fixed_size 0")
e("  .amdhsa_kernarg_size 96")
e("  .amdhsa_user_sgpr_count 2")
e("  .amdhsa_user_sgpr_kernarg_segment_ptr 1")
e("  .amdhsa_system_sgpr_workgroup_id_x 1")
e(".end_amdhsa_kernel")
open(("diag.s" if STAMPS==1 else "dd.s") if STAMPS else f"cdna_kernels/{NAME}.s","w").write("\n".join(L)+"\n")
print("lines", len(L))
```
